```python
import torch

def _softmax(x, axis=-1):
    return torch.softmax(x, dim=axis)
def _gelu(x):
    return torch.nn.functional.gelu(x, approximate="tanh")
def _silu(x):
    return torch.nn.functional.silu(x)
def _sigmoid(x):
    return torch.sigmoid(x)
def _layernorm(x, axis=-1, eps=1e-5):
    m = x.mean(dim=axis, keepdim=True)
    v = x.var(dim=axis, keepdim=True, unbiased=False)
    return (x - m) / torch.sqrt(v + eps)
def _scatter_add(tgt, idx, src, axis=0):
    return tgt.clone().index_add_(axis, idx, src)
def _segment_sum(src, seg, n):
    out = torch.zeros((n,) + src.shape[1:], dtype=src.dtype)
    return out.index_add_(0, seg, src)
def _pad(x, pw):
    flat = tuple(v for pair in reversed(pw) for v in pair)
    return torch.nn.functional.pad(x, flat)

kernel_name = 'sequential_preLN__compressed_kv_cla__dense_activation_squared_relu__prompt'

def setup_inputs():

    _w = (lambda a: (lambda t: t.to(torch.bfloat16) if t.is_floating_point() else t)(torch.as_tensor(a)))
    def _A_setup():
        B, H, Sq, Sk, D, M = 1, 32, 2048, 2048, 128, 576
        Dc = 4 * D
        return {
            "x": _w((lambda *s: torch.randn(*s, dtype=torch.bfloat16) * 0.05)(B, Sq, M)),
            "c_kv": _w((lambda *s: torch.randn(*s, dtype=torch.bfloat16) * 0.4)(B, Sk, Dc)),
            "w_q": _w((lambda *s: torch.randn(*s, dtype=torch.bfloat16) * 3.2)(M, H, D) * (M ** -0.5)),
            "w_uk": _w((lambda *s: torch.randn(*s, dtype=torch.bfloat16) * 3.2)(Dc, H, D) * (Dc ** -0.5)),
            "w_uv": _w((lambda *s: torch.randn(*s, dtype=torch.bfloat16) * 0.4)(Dc, H, D) * (Dc ** -0.5)),
            "w_o": _w((lambda *s: torch.randn(*s, dtype=torch.bfloat16) * 0.4)(H, D, M) * ((H * D) ** -0.5)),
        }
    _A_in = _A_setup()

    def _B_setup():
        B, S, D, F = 1, 2048, 576, 4608
        return {
            "x": _w((lambda *s: torch.randn(*s, dtype=torch.bfloat16) * 0.05)(B, S, D)),
            "w1": _w((lambda *s: torch.randn(*s, dtype=torch.bfloat16) * 0.05)(D, F)),
            "b1": _w((lambda *s: torch.randn(*s, dtype=torch.bfloat16) * 0.4)(F)),
            "w2": _w((lambda *s: torch.randn(*s, dtype=torch.bfloat16) * 0.05)(F, D)),
            "b2": _w((lambda *s: torch.randn(*s, dtype=torch.bfloat16) * 3.2)(D)),
        }
    _B_in = _B_setup()

    return {
        "A_x": _A_in["x"],
        "A_c_kv": _A_in["c_kv"],
        "A_w_q": _A_in["w_q"],
        "A_w_uk": _A_in["w_uk"],
        "A_w_uv": _A_in["w_uv"],
        "A_w_o": _A_in["w_o"],
        "B_x": _B_in["x"],
        "B_w1": _B_in["w1"],
        "B_b1": _B_in["b1"],
        "B_w2": _B_in["w2"],
        "B_b2": _B_in["b2"],
    }

def reference(A_x, A_c_kv, A_w_q, A_w_uk, A_w_uv, A_w_o, B_x, B_w1, B_b1, B_w2, B_b2):
    def _A_ref(x, c_kv, w_q, w_uk, w_uv, w_o):
        B, Sq, M = x.shape[0], x.shape[1], x.shape[2]
        Sk = c_kv.shape[1]
        H, D = w_q.shape[1], w_q.shape[2]
        q = torch.einsum("bqm,mhd->bhqd", x, w_q)
        k = torch.einsum("bkc,chd->bhkd", c_kv, w_uk)
        v = torch.einsum("bkc,chd->bhkd", c_kv, w_uv)
        scores = torch.einsum("bhqd,bhkd->bhqk", q, k) * (D ** -0.5)
        off = Sk - Sq
        qi = torch.arange(Sq)[:, None]
        kj = torch.arange(Sk)[None, :]
        cmask = kj <= (qi + off)
        scores = torch.where(cmask[None, None], scores, -1e9)
        p = _softmax(scores, axis=-1)
        ctx = torch.einsum("bhqk,bhkd->bhqd", p, v)
        return torch.einsum("bhqd,hdm->bqm", ctx, w_o)

    def _B_ref(x, w1, b1, w2, b2):
        h = torch.einsum("bsd,df->bsf", x, w1) + b1
        zero = torch.zeros_like(h)
        r = torch.where(h > zero, h, zero)
        h = r * r
        out = torch.einsum("bsf,fd->bsd", h, w2) + b2
        return out

    x = A_x
    h = x + _A_ref(_layernorm(x, axis=-1), A_c_kv, A_w_q, A_w_uk, A_w_uv, A_w_o)
    h2 = h + _B_ref(_layernorm(h, axis=-1), B_w1, B_b1, B_w2, B_b2)
    return h2
```

```python
import struct

KARG = dict(x=0, ckv=8, wq=16, wuk=24, wuv=32, wo=40, bx=48, w1=56, b1=64, w2=72, b2=80, out=88, dbg=96, ws=104)


def f32bits(x):
    return struct.unpack("<I", struct.pack("<f", x))[0]


class Asm:
    def __init__(self):
        self.L = []
        self.uid = 0
        self.kernels = []

    def __call__(self, s):
        self.L.append("    " + s)

    def many(self, lst):
        for s in lst:
            self(s)

    def label(self, s):
        self.L.append(s + ":")

    def c(self, s):
        self.L.append("    ; " + s)

    def newlabel(self, p):
        self.uid += 1
        return f"L_{p}_{self.uid}"

    def begin_kernel(self, name):
        self.L.append(f".globl {name}")
        self.L.append(".p2align 8")
        self.L.append(f".type {name},@function")
        self.L.append(f"{name}:")

    def end_kernel(self, name, vgpr, sgpr=96):
        self.kernels.append((name, vgpr, sgpr))

    def descriptors(self):
        out = ['.section .rodata,"a"']
        for name, vgpr, sgpr in self.kernels:
            acc = (vgpr + 3) // 4 * 4
            out += [".p2align 6", f".amdhsa_kernel {name}",
                    f"  .amdhsa_next_free_vgpr {vgpr}",
                    f"  .amdhsa_next_free_sgpr {sgpr}",
                    f"  .amdhsa_accum_offset {acc}",
                    "  .amdhsa_group_segment_fixed_size 0",
                    "  .amdhsa_kernarg_size 112",
                    "  .amdhsa_user_sgpr_count 2",
                    "  .amdhsa_user_sgpr_kernarg_segment_ptr 1",
                    "  .amdhsa_system_sgpr_workgroup_id_x 1",
                    ".end_amdhsa_kernel"]
        return out


class VAlloc:
    def __init__(self, start=0):
        self.n = start
        self.hi = start

    def get(self, cnt=1, align=1):
        self.n = (self.n + align - 1) // align * align
        r = self.n
        self.n += cnt
        self.hi = max(self.hi, self.n)
        return r


def vr(b, n):
    return f"v[{b}:{b + n - 1}]" if n > 1 else f"v{b}"


def sr(b, n):
    return f"s[{b}:{b + n - 1}]" if n > 1 else f"s{b}"


def srd_from(a, d, ptr, off, nbytes):
    if off:
        a(f"s_add_u32 s{d}, s{ptr}, 0x{off:x}")
        a(f"s_addc_u32 s{d + 1}, s{ptr + 1}, 0")
    else:
        a(f"s_mov_b32 s{d}, s{ptr}")
        a(f"s_mov_b32 s{d + 1}, s{ptr + 1}")
    a(f"s_mov_b32 s{d + 2}, 0x{nbytes:x}")
    a(f"s_mov_b32 s{d + 3}, 0x00020000")


def wave_reduce_add(a, v, sdst):
    for ctl in ("row_shr:1 row_mask:0xf", "row_shr:2 row_mask:0xf", "row_shr:4 row_mask:0xf", "row_shr:8 row_mask:0xf",
                "row_bcast:15 row_mask:0xa", "row_bcast:31 row_mask:0xc"):
        a("s_nop 1")
        a(f"v_add_f32_dpp v{v}, v{v}, v{v} {ctl} bank_mask:0xf")
    a("s_nop 1")
    a(f"v_readlane_b32 s{sdst}, v{v}, 63")
    a("s_nop 3")


def interleave(a, main, fill, start=0, per=None):
    n = len(main)
    fill = list(fill)
    if not fill:
        a.many(main)
        return
    avail = max(n - start, 1)
    k = 0
    for i, m in enumerate(main):
        a(m)
        if i >= start:
            tgt = ((i - start + 1) * len(fill) + avail - 1) // avail if per is None else (i - start + 1) * per
            while k < min(tgt, len(fill)):
                f = fill[k]
                if isinstance(f, str):
                    a(f)
                else:
                    a.many(f)
                k += 1
    while k < len(fill):
        f = fill[k]
        if isinstance(f, str):
            a(f)
        else:
            a.many(f)
        k += 1


def set_exec(a, mask):
    a(f"s_mov_b32 exec_lo, 0x{mask & 0xffffffff:x}")
    a(f"s_mov_b32 exec_hi, 0x{mask >> 32:x}")
```

```python
from asmlib import *
from layout import *

S_XN, S_WQ, S_K, S_V, S_C = 4, 8, 12, 16, 20
S_WAVE, S_W4, S_LD, S_HEAD, S_Q0, S_NT, S_NTM, S_T = 24, 25, 26, 27, 28, 29, 30, 31
S_KS, S_VS, S_KT, S_VT, S_HOFF, S_W4K = 32, 33, 34, 35, 36, 37
S_A, S_B, S_CC, S_D = 38, 39, 54, 55
S_M1, S_M2 = 40, 42
S_P0 = 44
S_THR, S_SC = 52, 53

vL, vKb, vVb, vKa, vVa, vl0, vl1, tA, tB, tC, vQm, vDMA, vW0 = 1, 2, 3, 4, 5, 6, 7, 8, 9, 10, 11, 12, 13
QF = 16
O = 48
S = [112, 144]
NEGM = 176
POOL = 192
NF = 16
PD = 8
KOFF, VOFF = 0, 65536
SCALE = 1.4426950408889634 * 128 ** -0.5
THR = 8.0


def F(n):
    return POOL + 4 * (n % NF)


def kread(n, item):
    sub, kk = item >> 3, item & 7
    return f"ds_read_b128 {vr(F(n), 4)}, v{vKa} offset:{2 * kk * 1024 + sub * 512}"


def vread(n, item):
    G, dt = item >> 2, item & 3
    return f"ds_read_b128 {vr(F(n), 4)}, v{vVa} offset:{G * 4096 + dt * 512}"


def qk_mfma(n, item, Sn):
    sub, kk = item >> 3, item & 7
    d = vr(Sn + 16 * sub, 16)
    c = vr(NEGM, 16) if kk == 0 else d
    return f"v_mfma_f32_32x32x16_bf16 {d}, {vr(F(n), 4)}, {vr(QF + 4 * kk, 4)}, {c}"


def pv_mfma(n, item, Sc):
    G, dt = item >> 2, item & 3
    d = vr(O + 16 * dt, 16)
    p = Sc + 16 * (G >> 1) + 4 * (G & 1)
    return f"v_mfma_f32_32x32x16_bf16 {d}, {vr(F(n), 4)}, {vr(p, 4)}, {d}"


def softmax_list(Sc):
    out = []
    for G in range(4):
        b = Sc + 16 * (G >> 1) + 8 * (G & 1)
        p = Sc + 16 * (G >> 1) + 4 * (G & 1)
        for i in range(8):
            out.append(f"v_exp_f32 v{b + i}, v{b + i}")
        for i in range(8):
            l = vl0 if i & 1 == 0 else vl1
            out.append(f"v_add_f32 v{l}, v{l}, v{b + i}")
        for i in range(4):
            out.append(f"v_cvt_pk_bf16_f32 v{p + i}, v{b + 2 * i}, v{b + 2 * i + 1}")
    return out


def max_list(Sn):
    out = []
    for sub, t in ((0, tA), (1, tB)):
        b = Sn + 16 * sub
        out.append(f"v_max3_f32 v{t}, v{b}, v{b + 1}, v{b + 2}")
        for i in range(3, 15, 2):
            out.append(f"v_max3_f32 v{t}, v{t}, v{b + i}, v{b + i + 1}")
        out.append(f"v_max_f32 v{t}, v{t}, v{b + 15}")
    out.append(f"v_max_f32 v{tA}, v{tA}, v{tB}")
    out.append(f"v_mov_b32 v{tB}, v{tA}")
    out.append("s_nop 1")
    out.append(f"v_permlane32_swap_b32 v{tA}, v{tB}")
    out.append("s_nop 1")
    out.append(f"v_max_f32 v{tA}, v{tA}, v{tB}")
    return out


def mask_block(a, Sn, tile_sreg_plus):
    skip = a.newlabel("nomask")
    a(f"s_add_u32 s{S_A}, s{S_T}, {tile_sreg_plus + 1}")
    a(f"s_cmp_lg_u32 s{S_A}, s{S_NT}")
    a(f"s_cbranch_scc1 {skip}")
    a("s_nop 15")
    a(f"s_add_u32 s{S_A}, s{S_T}, {tile_sreg_plus}")
    a(f"s_lshl_b32 s{S_A}, s{S_A}, 6")
    a(f"v_subrev_u32 v{tB}, s{S_A}, v{vQm}")
    a(f"v_mov_b32 v{tC}, 0xff800000")
    regs = [(Sn + j, 32 * (j >> 4) + 8 * ((j & 15) >> 2) + (j & 3)) for j in range(32)]
    for i in range(0, 32, 3):
        grp = regs[i:i + 3]
        ms = ["vcc", f"s[{S_M1}:{S_M1 + 1}]", f"s[{S_M2}:{S_M2 + 1}]"]
        for (r, c), m in zip(grp, ms):
            a(f"v_cmp_gt_i32 {m}, {c}, v{tB}")
        if len(grp) < 3:
            a("s_nop 1")
        for (r, c), m in zip(grp, ms):
            a(f"v_cndmask_b32 v{r}, v{r}, v{tC}, {m}")
    a.label(skip)


def mid_barrier(a):
    l1, l2, l3, l4, l5 = [a.newlabel("mb") for _ in range(5)]
    a(f"s_cmp_eq_u32 s{S_LD}, 0")
    a(f"s_cbranch_scc1 {l1}")
    a(f"s_add_u32 s{S_A}, s{S_T}, 4")
    a(f"s_cmp_lt_i32 s{S_A}, s{S_NTM}")
    a(f"s_cbranch_scc1 {l2}")
    a("s_waitcnt vmcnt(0)")
    a.label(l2)
    a("s_waitcnt vmcnt(8)")
    a("s_barrier")
    issue_tile(a, True, l3)
    issue_tile(a, False, l4)
    a(f"s_branch {l5}")
    a.label(l1)
    a("s_barrier")
    a.label(l5)


def issue_tile(a, isK, skip):
    st = S_KT if isK else S_VT
    srd = S_K if isK else S_V
    a(f"s_cmp_ge_u32 s{st}, s{S_NTM}")
    a(f"s_cbranch_scc1 {skip}")
    a(f"s_and_b32 s{S_A}, s{st}, 3")
    a(f"s_lshl_b32 s{S_A}, s{S_A}, 14")
    a(f"s_add_u32 s{S_A}, s{S_A}, s{S_W4K}")
    if isK:
        a(f"s_mov_b32 m0, s{S_A}")
    else:
        a(f"s_add_u32 m0, s{S_A}, 0x{VOFF:x}")
    a(f"s_lshl_b32 s{S_B}, s{st}, 14")
    a(f"s_add_u32 s{S_B}, s{S_B}, s{S_HOFF}")
    for i in range(4):
        a(f"buffer_load_dwordx4 v{vDMA}, s[{srd}:{srd + 3}], s{S_B} offen offset:{i * 1024} lds")
    a.label(skip)
    a(f"s_add_u32 s{st}, s{st}, 1")


def slots(a, mf, extras):
    for i, (pre, m, rd) in enumerate(mf):
        for x in pre:
            a(x)
        a(m)
        if rd:
            a(rd)
        for x in extras.get(i, []):
            a(x)


def spread(lst, first, nslots):
    ex = {}
    n = len(lst)
    for i, x in enumerate(lst):
        s = first + i * nslots // n
        ex.setdefault(s, []).append(x)
    return ex


def rescale_block(a, Sn):
    skip = a.newlabel("nors")
    a(f"v_cmp_lt_f32 vcc, s{S_THR}, v{tA}")
    a("s_nop 1")
    a(f"s_cbranch_vccz {skip}")
    a("s_nop 15")
    a(f"v_max_f32 v{tA}, 0, v{tA}")
    a(f"v_sub_f32 v{tB}, 0, v{tA}")
    a(f"v_exp_f32 v{tB}, v{tB}")
    a("s_nop 0")
    a(f"v_mul_f32 v{vl0}, v{vl0}, v{tB}")
    a(f"v_mul_f32 v{vl1}, v{vl1}, v{tB}")
    for i in range(64):
        a(f"v_mul_f32 v{O + i}, v{O + i}, v{tB}")
    for i in range(32):
        a(f"v_sub_f32 v{Sn + i}, v{Sn + i}, v{tA}")
    for i in range(16):
        a(f"v_sub_f32 v{NEGM + i}, v{NEGM + i}, v{tA}")
    a("s_nop 1")
    a.label(skip)


def emit_iter(a, p):
    Sc, Sn = S[p], S[p ^ 1]
    mf = []
    for n in range(16):
        m = n + PD
        rd = kread(m, m) if m < 16 else vread(m, m - 16)
        mf.append(([f"s_waitcnt lgkmcnt({PD - 1})"], qk_mfma(n, n, Sn), rd))
    ex = spread(softmax_list(Sc), 0, 16)
    a(f"v_add_u32 v{vVa}, s{S_VS}, v{vVb}")
    slots(a, mf, ex)
    mid_barrier(a)
    a(f"v_add_u32 v{vKa}, s{S_KS}, v{vKb}")
    mask_block(a, Sn, 1)
    mf = []
    for n in range(16, 32):
        m = n + PD
        rd = vread(m, m - 16) if m < 32 else kread(m, m - 32)
        mf.append(([f"s_waitcnt lgkmcnt({PD - 1})"], pv_mfma(n, n - 16, Sc), rd))
    ex = spread(max_list(Sn), 1, 12)
    slots(a, mf, ex)
    a(f"s_add_u32 s{S_KS}, s{S_KS}, 0x4000")
    a(f"s_and_b32 s{S_KS}, s{S_KS}, 0xffff")
    a(f"s_add_u32 s{S_VS}, s{S_VS}, 0x4000")
    a(f"s_and_b32 s{S_VS}, s{S_VS}, 0xffff")
    rescale_block(a, Sn)
    a(f"s_add_u32 s{S_T}, s{S_T}, 1")


def emit_epilogue(a, pc, done):
    Sc = S[pc]
    a("s_waitcnt lgkmcnt(0)")
    a(f"v_add_u32 v{vVa}, s{S_VS}, v{vVb}")
    for n in range(PD):
        a(vread(n, n))
    a.many(softmax_list(Sc))
    mf = []
    for n in range(16):
        m = n + PD
        rd = vread(m, m) if m < 16 else None
        w = min(PD - 1, 15 - n)
        mf.append(([f"s_waitcnt lgkmcnt({w})"], pv_mfma(n, n, Sc), rd))
    slots(a, mf, {})
    a(f"v_add_f32 v{vl0}, v{vl0}, v{vl1}")
    a(f"v_mov_b32 v{vl1}, v{vl0}")
    a("s_nop 1")
    a(f"v_permlane32_swap_b32 v{vl0}, v{vl1}")
    a("s_nop 1")
    a(f"v_add_f32 v{vl0}, v{vl0}, v{vl1}")
    a(f"v_rcp_f32 v{vl0}, v{vl0}")
    a(f"v_and_b32 v{tA}, 31, v{vL}")
    a(f"v_add_u32 v{tA}, s{S_Q0}, v{tA}")
    a(f"v_lshlrev_b32 v{tA}, 13, v{tA}")
    a(f"v_lshrrev_b32 v{tB}, 5, v{vL}")
    a(f"v_lshl_add_u32 v{tA}, v{tB}, 4, v{tA}")
    a(f"s_lshl_b32 s{S_A}, s{S_HEAD}, 8")
    a("s_nop 7")
    for j in range(8):
        b = O + 8 * j
        for i in range(8):
            a(f"v_mul_f32 v{b + i}, v{b + i}, v{vl0}")
        for i in range(4):
            a(f"v_cvt_pk_bf16_f32 v{b + i}, v{b + 2 * i}, v{b + 2 * i + 1}")
        a(f"buffer_store_dwordx4 {vr(b, 4)}, v{tA}, s[{S_C}:{S_C + 3}], s{S_A} offen offset:{j * 32}")
    a(f"s_branch {done}")


def gen_attn(a):
    name = "attn_kernel"
    a.begin_kernel(name)
    end = "L_attn_end"
    a("s_cmp_ge_u32 s2, 256")
    a(f"s_cbranch_scc1 {end}")
    a(f"s_load_dwordx2 s[{S_P0}:{S_P0 + 1}], s[0:1], {KARG['wq']}")
    a(f"s_load_dwordx2 s[{S_P0 + 2}:{S_P0 + 3}], s[0:1], {KARG['ws']}")
    a(f"v_lshrrev_b32 v{tA}, 6, v0")
    a(f"v_and_b32 v{vL}, 63, v0")
    a("s_nop 0")
    a(f"v_readfirstlane_b32 s{S_WAVE}, v{tA}")
    a("s_nop 3")
    a(f"s_and_b32 s{S_W4}, s{S_WAVE}, 3")
    a(f"s_lshl_b32 s{S_W4K}, s{S_W4}, 12")
    a(f"s_and_b32 s{S_HEAD}, s2, 31")
    a(f"s_lshr_b32 s{S_A}, s2, 5")
    a(f"s_sub_u32 s{S_B}, 15, s{S_A}")
    a(f"s_lshl_b32 s{S_NTM}, s{S_B}, 1")
    a(f"s_add_u32 s{S_NTM}, s{S_NTM}, 2")
    a(f"s_cmp_lt_u32 s{S_WAVE}, 4")
    a(f"s_cselect_b32 s{S_LD}, 1, 0")
    a(f"s_cselect_b32 s{S_A}, s{S_A}, s{S_B}")
    a(f"s_lshl_b32 s{S_Q0}, s{S_A}, 7")
    a(f"s_lshl_b32 s{S_B}, s{S_W4}, 5")
    a(f"s_add_u32 s{S_Q0}, s{S_Q0}, s{S_B}")
    a(f"s_lshl_b32 s{S_NT}, s{S_A}, 1")
    a(f"s_lshr_b32 s{S_B}, s{S_W4}, 1")
    a(f"s_add_u32 s{S_NT}, s{S_NT}, s{S_B}")
    a(f"s_add_u32 s{S_NT}, s{S_NT}, 1")
    a(f"s_lshl_b32 s{S_HOFF}, s{S_HEAD}, 19")
    a(f"s_add_u32 s{S_HOFF}, s{S_HOFF}, s{S_W4K}")
    a(f"s_mov_b32 s{S_THR}, 0x{f32bits(THR):x}")
    a(f"s_mov_b32 s{S_SC}, 0x{f32bits(SCALE):x}")
    a("s_waitcnt lgkmcnt(0)")
    srd_from(a, S_XN, S_P0 + 2, WS_XN, 2048 * 1152)
    srd_from(a, S_WQ, S_P0, 0, 576 * 8192)
    srd_from(a, S_K, S_P0 + 2, WS_K, 16 * MB)
    srd_from(a, S_V, S_P0 + 2, WS_V, 16 * MB)
    srd_from(a, S_C, S_P0 + 2, WS_CTX, 16 * MB)
    a(f"v_lshrrev_b32 v{tA}, 4, v{vL}")
    a(f"v_lshlrev_b32 v{tA}, 15, v{tA}")
    a(f"v_and_b32 v{tB}, 15, v{vL}")
    a(f"v_lshl_add_u32 v{tA}, v{tB}, 4, v{tA}")
    a(f"s_lshr_b32 s{S_A}, s{S_WAVE}, 2")
    a(f"s_lshl_b32 s{S_A}, s{S_A}, 4")
    a(f"s_add_u32 s{S_A}, s{S_A}, s{S_W4}")
    a(f"s_lshl_b32 s{S_A}, s{S_A}, 13")
    a(f"s_lshl_b32 s{S_B}, s{S_HEAD}, 8")
    a(f"s_add_u32 s{S_A}, s{S_A}, s{S_B}")
    a(f"s_mul_i32 s{S_B}, s{S_WAVE}, 1088")
    for i in range(18):
        a(f"s_add_u32 m0, s{S_B}, {i * 8704}")
        a("s_nop 0")
        a(f"buffer_load_dwordx4 v{tA}, s[{S_WQ}:{S_WQ + 3}], s{S_A} offen lds")
        a(f"s_add_u32 s{S_A}, s{S_A}, 0x{32 * 8192:x}")
    XR = [O + 4 * i for i in range(16)] + [NEGM + 4 * i for i in range(4)] + [S[0] + 4 * i for i in range(8)] + \
         [POOL + 32 + 4 * i for i in range(8)]
    a(f"v_and_b32 v{tB}, 31, v{vL}")
    a(f"v_add_u32 v{tB}, s{S_Q0}, v{tB}")
    a(f"v_mul_u32_u24 v{tC}, 1152, v{tB}")
    a(f"v_lshrrev_b32 v{vQm}, 5, v{vL}")
    a(f"v_lshl_add_u32 v{tC}, v{vQm}, 4, v{tC}")
    for kk in range(36):
        a(f"buffer_load_dwordx4 {vr(XR[kk], 4)}, v{tC}, s[{S_XN}:{S_XN + 3}], 0 offen offset:{kk * 32}")
    a(f"v_lshlrev_b32 v{vQm}, 2, v{vQm}")
    a(f"v_sub_u32 v{vQm}, v{tB}, v{vQm}")
    a(f"v_bfe_u32 v{tA}, v{vL}, 2, 2")
    a(f"v_mul_u32_u24 v{vW0}, 1088, v{tA}")
    a(f"v_lshrrev_b32 v{tA}, 5, v{vL}")
    a(f"v_lshl_add_u32 v{vW0}, v{tA}, 9, v{vW0}")
    a(f"v_bfe_u32 v{tA}, v{vL}, 4, 1")
    a(f"v_lshl_add_u32 v{vW0}, v{tA}, 5, v{vW0}")
    a(f"v_and_b32 v{tA}, 3, v{vL}")
    a(f"v_lshl_add_u32 v{vW0}, v{tA}, 3, v{vW0}")
    a(f"v_add_u32 v{vW0 + 1}, 0x10000, v{vW0}")
    a(f"v_add_u32 v{vW0 + 2}, 0x20000, v{vW0}")
    a(f"v_and_b32 v{tA}, 31, v{vL}")
    a(f"v_lshlrev_b32 v{tA}, 4, v{tA}")
    a(f"v_lshrrev_b32 v{tB}, 5, v{vL}")
    a(f"v_lshl_add_u32 v{vKb}, v{tB}, 10, v{tA}")
    a(f"v_lshl_add_u32 v{vVb}, v{tB}, 11, v{tA}")
    a(f"v_add_u32 v{vVb}, 0x{VOFF:x}, v{vVb}")
    a(f"v_lshlrev_b32 v{vDMA}, 4, v{vL}")
    QA = [QF, QF + 16, S[1], S[1] + 16]
    for r in QA:
        for i in range(16):
            a(f"v_mov_b32 v{r + i}, 0")
    a("s_waitcnt vmcnt(0)")
    a("s_barrier")

    def wread(n):
        kk, dt = n >> 2, n & 3
        o = kk * 4352 + dt * 64
        f = POOL + 4 * (n % 8)
        return [f"ds_read_b64_tr_b16 {vr(f, 2)}, v{vW0 + (o >> 16)} offset:{o & 0xffff}",
                f"ds_read_b64_tr_b16 {vr(f + 2, 2)}, v{vW0 + ((o + 256) >> 16)} offset:{(o + 256) & 0xffff}"]
    QPD = 6
    for n in range(QPD):
        a.many(wread(n))
    for n in range(144):
        kk, dt = n >> 2, n & 3
        w = min(QPD - 1, 143 - n) * 2
        a(f"s_waitcnt lgkmcnt({w})")
        c = vr(QA[dt], 16)
        a(f"v_mfma_f32_32x32x16_bf16 {c}, {vr(POOL + 4 * (n % 8), 4)}, {vr(XR[kk], 4)}, {c}")
        if n + QPD < 144:
            a.many(wread(n + QPD))
    a("s_barrier")
    nl = a.newlabel("nold")
    a(f"s_mov_b32 s{S_KT}, 0")
    a(f"s_mov_b32 s{S_VT}, 0")
    a(f"s_cmp_eq_u32 s{S_LD}, 0")
    a(f"s_cbranch_scc1 {nl}")
    for isK in (True, True, True, False, True, False):
        issue_tile(a, isK, a.newlabel("it"))
    a.label(nl)
    a("s_nop 7")
    for G in range(8):
        src = QA[G >> 1] + 8 * (G & 1)
        for i in range(8):
            a(f"v_mul_f32 v{src + i}, s{S_SC}, v{src + i}")
        for i in range(4):
            a(f"v_cvt_pk_bf16_f32 v{QF + 4 * G + i}, v{src + 2 * i}, v{src + 2 * i + 1}")
    for i in range(64):
        a(f"v_mov_b32 v{O + i}, 0")
    for i in range(16):
        a(f"v_mov_b32 v{NEGM + i}, 0")
    a(f"v_mov_b32 v{vl0}, 0")
    a(f"v_mov_b32 v{vl1}, 0")
    a(f"v_mov_b32 v{vKa}, v{vKb}")
    a(f"s_mov_b32 s{S_T}, -1")
    a(f"s_mov_b32 s{S_KS}, 0x4000")
    a(f"s_mov_b32 s{S_VS}, 0")
    a("s_waitcnt vmcnt(20)")
    a("s_barrier")
    for n in range(PD):
        a(kread(n, n))
    mf = []
    for n in range(16):
        m = n + PD
        rd = kread(m, m) if m < 16 else None
        w = min(PD - 1, 15 - n)
        mf.append(([f"s_waitcnt lgkmcnt({w})"], qk_mfma(n, n, S[0]), rd))
    slots(a, mf, {})
    mid_barrier(a)
    a(f"v_add_u32 v{vKa}, s{S_KS}, v{vKb}")
    for n in range(PD):
        a(kread(n, n))
    a(f"s_add_u32 s{S_KS}, s{S_KS}, 0x4000")
    a("s_nop 7")
    mask_block(a, S[0], 1)
    a.many(max_list(S[0]))
    for i in range(32):
        a(f"v_sub_f32 v{S[0] + i}, v{S[0] + i}, v{tA}")
    for i in range(16):
        a(f"v_sub_f32 v{NEGM + i}, 0, v{tA}")
    a(f"s_mov_b32 s{S_T}, 0")
    ep0, ep1, loop, done = "L_attn_ep0", "L_attn_ep1", "L_attn_loop", "L_attn_done"
    a(f"s_cmp_eq_u32 s{S_NT}, 1")
    a(f"s_cbranch_scc1 {ep0}")
    a.label(loop)
    emit_iter(a, 0)
    a(f"s_add_u32 s{S_A}, s{S_T}, 1")
    a(f"s_cmp_eq_u32 s{S_A}, s{S_NT}")
    a(f"s_cbranch_scc1 {ep1}")
    emit_iter(a, 1)
    a(f"s_add_u32 s{S_A}, s{S_T}, 1")
    a(f"s_cmp_lg_u32 s{S_A}, s{S_NT}")
    a(f"s_cbranch_scc1 {loop}")
    a.label(ep0)
    emit_epilogue(a, 0, done)
    a.label(ep1)
    emit_epilogue(a, 1, done)
    a.label(done)
    a(f"s_cmp_eq_u32 s{S_LD}, 0")
    a(f"s_cbranch_scc1 {end}")
    ll = "L_attn_ldloop"
    a.label(ll)
    a(f"s_add_u32 s{S_A}, s{S_T}, 1")
    a(f"s_cmp_ge_u32 s{S_A}, s{S_NTM}")
    a(f"s_cbranch_scc1 {end}")
    mid_barrier(a)
    a(f"s_add_u32 s{S_T}, s{S_T}, 1")
    a(f"s_branch {ll}")
    a.label(end)
    a("s_endpgm")
    a.end_kernel(name, 256)
    return (name, 256, 512, 144 * 1088)
```

```python
from asmlib import *
from layout import *

S_A, S_W, S_O, S_X, S_Y = 4, 8, 12, 16, 40
S_WAVE, S_WM, S_WN, S_GK, S_M0, S_N0, S_SPLIT = 20, 21, 22, 23, 24, 25, 26
S_OFFA, S_OFFW, S_MA, S_MW, S_CNT = 27, 28, 29, 30, 31
S_T0, S_T1, S_T2, S_T3 = 32, 33, 34, 35
S_P0 = 44


def emit_ln(a, vals, mask, va_tmp, out_pk):
    acc, mean, t, u, rinv, d = [va_tmp + i for i in range(6)]
    a(f"v_mov_b32 v{acc}, 0")
    set_exec(a, mask)
    for v in vals:
        a(f"v_add_f32 v{acc}, v{acc}, v{v}")
    a("s_mov_b64 exec, -1")
    wave_reduce_add(a, acc, 36)
    a(f"s_mov_b32 s37, 0x{f32bits(1.0 / 576):x}")
    a(f"v_mov_b32 v{mean}, s36")
    a(f"v_mul_f32 v{mean}, s37, v{mean}")
    a(f"v_mov_b32 v{acc}, 0")
    set_exec(a, mask)
    for v in vals:
        a(f"v_sub_f32 v{d}, v{v}, v{mean}")
        a(f"v_fmac_f32 v{acc}, v{d}, v{d}")
    a("s_mov_b64 exec, -1")
    wave_reduce_add(a, acc, 36)
    a(f"v_mov_b32 v{t}, s36")
    a(f"v_mul_f32 v{t}, s37, v{t}")
    a(f"v_cvt_pk_bf16_f32 v{t}, v{t}, v{mean}")
    a(f"v_and_b32 v{mean}, 0xffff0000, v{t}")
    a(f"v_lshlrev_b32 v{t}, 16, v{t}")
    a(f"v_add_f32 v{t}, 0x{f32bits(1e-5):x}, v{t}")
    a(f"v_cvt_pk_bf16_f32 v{t}, v{t}, v{t}")
    a(f"v_lshlrev_b32 v{t}, 16, v{t}")
    a(f"v_sqrt_f32 v{t}, v{t}")
    a("s_nop 0")
    a(f"v_cvt_pk_bf16_f32 v{t}, v{t}, v{t}")
    a(f"v_lshlrev_b32 v{t}, 16, v{t}")
    a(f"v_rcp_f32 v{rinv}, v{t}")
    for i in range(0, len(vals), 2):
        a(f"v_sub_f32 v{d}, v{vals[i]}, v{mean}")
        a(f"v_sub_f32 v{u}, v{vals[i + 1]}, v{mean}")
        a(f"v_cvt_pk_bf16_f32 v{d}, v{d}, v{u}")
        a(f"v_and_b32 v{u}, 0xffff0000, v{d}")
        a(f"v_lshlrev_b32 v{d}, 16, v{d}")
        a(f"v_mul_f32 v{d}, v{d}, v{rinv}")
        a(f"v_mul_f32 v{u}, v{u}, v{rinv}")
        a(f"v_cvt_pk_bf16_f32 v{out_pk[i // 2]}, v{d}, v{u}")


class Gemm:
    def __init__(self, a, tag, BM, BN, BKS, NS, GM, GN, GK, KLEN, lda, ldw, epi, w_perm=True, swap=False):
        self.a = a
        self.tag = tag
        self.BM, self.BN, self.BKS, self.NS = BM, BN, BKS, NS
        self.GM, self.GN, self.GK = GM, GN, GK
        assert GM * GN * GK == 8
        self.TM = BM // GM // 16
        self.TN = BN // GN // 16
        self.KSW = BKS // 32 // GK
        self.NST = KLEN // BKS
        assert KLEN % BKS == 0
        self.lda, self.ldw = lda, ldw
        self.epi = epi
        self.w_perm = w_perm
        self.swap = swap
        self.RB = BKS * 2
        self.WB = BN * 2
        self.NA = BM * self.RB // 1024 // 8
        if self.WB == 288:
            assert BKS == 64
            self.NW = 3
            self.WBYTES = BKS * 288
        else:
            assert self.WB == 512 and BKS == 32
            self.NW = 2
            self.WBYTES = 16 * 1056
        self.ABYTES = BM * self.RB
        self.SS = self.ABYTES + self.WBYTES
        self.LDS = self.SS * NS
        assert self.LDS <= 163840
        self.D = self.NA + self.NW

    def alloc(self, va):
        self.vL = va.get()
        self.vT = va.get(8)
        self.vA_off = [va.get() for _ in range(self.NA)]
        self.vW_off = [va.get() for _ in range(self.NW)]
        nb = (self.LDS + 65535) // 65536
        self.nb = nb
        nka = self.KSW if self.RB == 128 else 1
        self.vA_rd = [[va.get() for _ in range(nb)] for _ in range(nka)]
        self.vW_rd = [va.get() for _ in range(nb)]
        self.fa = [[va.get(4, 4) for _ in range(self.TM)] for _ in range(2)]
        self.fw = [[va.get(4, 4) for _ in range(self.TN)] for _ in range(2)]
        self.acc = [[va.get(4, 4) for _ in range(self.TM)] for _ in range(self.TN)]

    def setup_addrs(self):
        a = self.a
        L, T = self.vL, self.vT
        RB = self.RB
        CPR = RB // 16
        RPI = 1024 // RB
        cs = {4: 2, 8: 3}[CPR]
        for ia in range(self.NA):
            a(f"s_mul_i32 s{S_T0}, s{S_WAVE}, {self.NA * RPI}")
            a(f"s_add_u32 s{S_T0}, s{S_T0}, {ia * RPI}")
            a(f"v_lshrrev_b32 v{T}, {cs}, v{L}")
            a(f"v_add_u32 v{T}, s{S_T0}, v{T}")
            if RB == 128:
                a(f"v_bfe_u32 v{T + 1}, v{T}, 1, 3")
            else:
                a(f"v_bfe_u32 v{T + 1}, v{T}, 3, 1")
                a(f"v_mul_u32_u24 v{T + 1}, 3, v{T + 1}")
            a(f"v_and_b32 v{T + 2}, {CPR - 1}, v{L}")
            a(f"v_xor_b32 v{T + 2}, v{T + 2}, v{T + 1}")
            a(f"v_lshlrev_b32 v{T + 2}, 4, v{T + 2}")
            a(f"v_add_u32 v{T}, s{S_M0}, v{T}")
            a(f"s_mov_b32 s{S_T1}, {self.lda}")
            a(f"v_mul_lo_u32 v{T}, v{T}, s{S_T1}")
            a(f"v_add_u32 v{self.vA_off[ia]}, v{T}, v{T + 2}")
        a(f"s_mul_i32 s{S_MA}, s{S_WAVE}, {self.NA * 1024}")
        a(f"s_lshl_b32 s{S_T2}, s{S_N0}, 1")
        a(f"s_mov_b32 s{S_T1}, {self.ldw}")
        if self.WB == 288:
            for i in range(3):
                a(f"v_add_u32 v{T}, {64 * i}, v{L}")
                a(f"v_mul_u32_u24 v{T + 1}, 57, v{T}")
                a(f"v_lshrrev_b32 v{T + 1}, 10, v{T + 1}")
                a(f"v_mul_u32_u24 v{T + 2}, 18, v{T + 1}")
                a(f"v_sub_u32 v{T + 2}, v{T}, v{T + 2}")
                a(f"s_lshl_b32 s{S_T0}, s{S_WAVE}, 3")
                a(f"v_add_u32 v{T + 1}, s{S_T0}, v{T + 1}")
                if self.w_perm:
                    a(f"v_bfe_u32 v{T + 3}, v{T + 1}, 2, 1")
                    a(f"v_bfe_u32 v{T + 4}, v{T + 1}, 3, 1")
                    a(f"v_and_b32 v{T + 1}, 0xfffffff3, v{T + 1}")
                    a(f"v_lshl_or_b32 v{T + 1}, v{T + 3}, 3, v{T + 1}")
                    a(f"v_lshl_or_b32 v{T + 1}, v{T + 4}, 2, v{T + 1}")
                a(f"v_mul_lo_u32 v{T + 1}, v{T + 1}, s{S_T1}")
                a(f"v_lshl_add_u32 v{T + 1}, v{T + 2}, 4, v{T + 1}")
                a(f"v_add_u32 v{self.vW_off[i]}, s{S_T2}, v{T + 1}")
            a(f"s_mul_i32 s{S_MW}, s{S_WAVE}, {144 * 16}")
        else:
            for i in range(2):
                a(f"s_lshl_b32 s{S_T0}, s{S_WAVE}, 1")
                a(f"s_add_u32 s{S_T0}, s{S_T0}, {i}")
                a(f"s_and_b32 s{S_T3}, s{S_T0}, 3")
                a(f"s_lshr_b32 s{S_T0}, s{S_T0}, 2")
                a(f"s_lshl_b32 s{S_T0}, s{S_T0}, 3")
                a(f"s_add_u32 s{S_T0}, s{S_T0}, s{S_T3}")
                a(f"v_lshrrev_b32 v{T}, 5, v{L}")
                a(f"v_lshlrev_b32 v{T}, 2, v{T}")
                a(f"v_add_u32 v{T}, s{S_T0}, v{T}")
                a(f"v_mul_lo_u32 v{T}, v{T}, s{S_T1}")
                a(f"v_and_b32 v{T + 1}, 31, v{L}")
                a(f"v_lshl_add_u32 v{T}, v{T + 1}, 4, v{T}")
                a(f"v_add_u32 v{self.vW_off[i]}, s{S_T2}, v{T}")
            a(f"s_mul_i32 s{S_MW}, s{S_WAVE}, {2 * 1056}")
        a(f"s_mul_i32 s{S_T0}, s{S_WM}, {self.TM * 16}")
        a(f"v_and_b32 v{T}, 15, v{L}")
        a(f"v_add_u32 v{T}, s{S_T0}, v{T}")
        a(f"v_lshrrev_b32 v{T + 1}, 4, v{L}")
        r0 = self.vA_rd[0][0]
        if RB == 128:
            if self.GK == 2:
                a(f"s_lshl_b32 s{S_T1}, s{S_GK}, 2")
                a(f"v_add_u32 v{T + 1}, s{S_T1}, v{T + 1}")
            a(f"v_bfe_u32 v{T + 2}, v{T}, 1, 3")
            a(f"v_xor_b32 v{T + 1}, v{T + 1}, v{T + 2}")
            a(f"v_lshlrev_b32 v{T + 1}, 4, v{T + 1}")
            a(f"v_lshl_add_u32 v{r0}, v{T}, 7, v{T + 1}")
            if len(self.vA_rd) == 2:
                a(f"v_xor_b32 v{self.vA_rd[1][0]}, 64, v{r0}")
        else:
            a(f"v_bfe_u32 v{T + 2}, v{T}, 3, 1")
            a(f"v_mul_u32_u24 v{T + 2}, 3, v{T + 2}")
            a(f"v_xor_b32 v{T + 1}, v{T + 1}, v{T + 2}")
            a(f"v_lshlrev_b32 v{T + 1}, 4, v{T + 1}")
            a(f"v_lshl_add_u32 v{r0}, v{T}, 6, v{T + 1}")
        for rs in self.vA_rd:
            for k in range(1, self.nb):
                a(f"v_add_u32 v{rs[k]}, 0x{65536 * k:x}, v{rs[0]}")
        w0 = self.vW_rd[0]
        a(f"v_lshrrev_b32 v{T}, 4, v{L}")
        a(f"v_bfe_u32 v{T + 1}, v{L}, 2, 2")
        a(f"v_and_b32 v{T + 2}, 3, v{L}")
        if self.WB == 288:
            a(f"v_lshrrev_b32 v{T + 3}, 1, v{T}")
            a(f"v_lshl_add_u32 v{T + 1}, v{T + 3}, 4, v{T + 1}")
            a(f"v_and_b32 v{T + 3}, 1, v{T}")
            a(f"v_lshl_add_u32 v{T + 1}, v{T + 3}, 2, v{T + 1}")
            a(f"v_mul_u32_u24 v{T + 1}, 288, v{T + 1}")
            a(f"v_lshl_add_u32 v{w0}, v{T + 2}, 3, v{T + 1}")
            if self.GK == 2:
                a(f"s_mul_i32 s{S_T1}, s{S_GK}, {32 * 288}")
                a(f"v_add_u32 v{w0}, s{S_T1}, v{w0}")
        else:
            a(f"v_lshl_add_u32 v{T + 1}, v{T}, 2, v{T + 1}")
            a(f"v_mul_u32_u24 v{T + 1}, 1056, v{T + 1}")
            a(f"v_lshl_add_u32 v{w0}, v{T + 2}, 3, v{T + 1}")
        a(f"s_mul_i32 s{S_T1}, s{S_WN}, {self.TN * 32}")
        a(f"v_add_u32 v{w0}, s{S_T1}, v{w0}")
        for k in range(1, self.nb):
            a(f"v_add_u32 v{self.vW_rd[k]}, 0x{65536 * k:x}, v{w0}")

    def zero_acc(self):
        for row in self.acc:
            for r in row:
                for j in range(4):
                    self.a(f"v_mov_b32 v{r + j}, 0")

    def dma_items(self, buf):
        base = buf * self.SS
        it = []
        for ia in range(self.NA):
            it.append([f"s_add_u32 m0, s{S_MA}, 0x{base + ia * 1024:x}", "s_nop 0",
                       f"buffer_load_dwordx4 v{self.vA_off[ia]}, s[{S_A}:{S_A + 3}], s{S_OFFA} offen lds"])
        wb = base + self.ABYTES
        for i in range(self.NW):
            step = 1024 if self.WB == 288 else 1056
            g = [f"s_add_u32 m0, s{S_MW}, 0x{wb + i * step:x}"]
            if self.WB == 288 and i == 2:
                g += ["s_mov_b64 exec, 0xffff",
                      f"buffer_load_dwordx4 v{self.vW_off[i]}, s[{S_W}:{S_W + 3}], s{S_OFFW} offen lds",
                      "s_mov_b64 exec, -1"]
            else:
                g += ["s_nop 0", f"buffer_load_dwordx4 v{self.vW_off[i]}, s[{S_W}:{S_W + 3}], s{S_OFFW} offen lds"]
            it.append(g)
        it.append([f"s_add_u32 s{S_OFFA}, s{S_OFFA}, {self.BKS * 2}",
                   f"s_add_u32 s{S_OFFW}, s{S_OFFW}, 0x{self.BKS * self.ldw:x}"])
        return it

    def rd(self, regs, off):
        return regs[off >> 16], off & 0xffff

    def frag_reads(self, buf, ks, fb):
        base = buf * self.SS
        out = []
        ka = ks if len(self.vA_rd) == 2 else 0
        ksoff = ks * 32 * 288 if (self.WB == 288 and self.GK == 1) else 0
        sec = 8 * 288 if self.WB == 288 else 512
        for tn in range(self.TN):
            o = base + self.ABYTES + ksoff + tn * 32
            r, im = self.rd(self.vW_rd, o)
            out.append(f"ds_read_b64_tr_b16 {vr(self.fw[fb][tn], 2)}, v{r} offset:{im}")
            r, im = self.rd(self.vW_rd, o + sec)
            out.append(f"ds_read_b64_tr_b16 {vr(self.fw[fb][tn] + 2, 2)}, v{r} offset:{im}")
            if tn == 0:
                for tm in range(self.TM):
                    r, im = self.rd(self.vA_rd[ka], base + tm * 16 * self.RB)
                    out.append(f"ds_read_b128 {vr(self.fa[fb][tm], 4)}, v{r} offset:{im}")
        return out

    def mfmas(self, fb):
        out = []
        for tn in range(self.TN):
            for tm in range(self.TM):
                c = vr(self.acc[tn][tm], 4)
                w = vr(self.fw[fb][tn], 4)
                x = vr(self.fa[fb][tm], 4)
                if self.swap:
                    out.append(f"v_mfma_f32_16x16x32_bf16 {c}, {x}, {w}, {c}")
                else:
                    out.append(f"v_mfma_f32_16x16x32_bf16 {c}, {w}, {x}, {c}")
        return out

    def stage(self, s_buf, par, issue, vm, has_next):
        a = self.a
        for ks in range(self.KSW):
            last = ks == self.KSW - 1
            a("s_waitcnt lgkmcnt(0)")
            fill = []
            if last:
                if has_next:
                    a(f"s_waitcnt vmcnt({vm})")
                    a("s_barrier")
                    fill += self.frag_reads((s_buf + 1) % self.NS, 0, par ^ 1)
                    if issue:
                        d = self.dma_items(s_buf)
                        f2 = []
                        step = max(1, len(fill) // len(d))
                        di = 0
                        for i, f in enumerate(fill):
                            f2.append(f)
                            if i % step == step - 1 and di < len(d):
                                f2.append(d[di]); di += 1
                        f2 += d[di:]
                        fill = f2
            else:
                fill += self.frag_reads(s_buf, ks + 1, par ^ 1)
            interleave(a, self.mfmas(par), fill)
            par ^= 1
        return par

    def mainloop(self):
        a = self.a
        NS, NST, D = self.NS, self.NST, self.D
        a(f"s_waitcnt vmcnt({(NS - 1) * D})")
        a("s_barrier")
        a.many(self.frag_reads(0, 0, 0))
        par = 0
        nmain = NST - NS
        r = nmain % NS
        s = 0
        for _ in range(r):
            par = self.stage(s % NS, par, True, (NS - 2) * D, True)
            s += 1
        trips = (nmain - r) // NS
        if trips > 0:
            assert (NS * self.KSW) % 2 == 0
            lab = a.newlabel(self.tag + "_loop")
            a(f"s_mov_b32 s{S_CNT}, {trips}")
            a.label(lab)
            for i in range(NS):
                par = self.stage((s + i) % NS, par, True, (NS - 2) * D, True)
            a(f"s_sub_u32 s{S_CNT}, s{S_CNT}, 1")
            a(f"s_cmp_lg_u32 s{S_CNT}, 0")
            a(f"s_cbranch_scc1 {lab}")
            s += trips * NS
        while s < NST:
            vm = (min(s + NS - 1, NST - 1) - (s + 1)) * D if s + 1 < NST else 0
            par = self.stage(s % NS, par, False, vm, s + 1 < NST)
            s += 1
        a("s_nop 15")

    def prologue_dma(self):
        for b in range(self.NS):
            for g in self.dma_items(b):
                self.a.many(g)


def common_head(a, nwg, endlab):
    a(f"s_cmp_ge_u32 s2, {nwg}")
    a(f"s_cbranch_scc1 {endlab}")


def wave_ids(a, g):
    a(f"v_lshrrev_b32 v{g.vT}, 6, v0")
    a(f"v_and_b32 v{g.vL}, 63, v0")
    a("s_nop 0")
    a(f"v_readfirstlane_b32 s{S_WAVE}, v{g.vT}")
    a("s_nop 3")
    gm = g.GM.bit_length() - 1
    gn = g.GN.bit_length() - 1
    a(f"s_and_b32 s{S_WM}, s{S_WAVE}, {g.GM - 1}")
    a(f"s_lshr_b32 s{S_T0}, s{S_WAVE}, {gm}")
    a(f"s_and_b32 s{S_WN}, s{S_T0}, {g.GN - 1}")
    a(f"s_lshr_b32 s{S_GK}, s{S_T0}, {gn}")


def gen_kv(a):
    name = "kv_proj_kernel"
    a.begin_kernel(name)
    end = "L_kv_end"
    common_head(a, 256, end)
    gK = Gemm(a, "kvk", 256, 256, 32, 4, 4, 2, 1, 512, 1024, 8192, "K", swap=False)
    gV = Gemm(a, "kvv", 256, 256, 32, 4, 4, 2, 1, 512, 1024, 8192, "V", swap=True)
    va = VAlloc(1)
    gK.alloc(va)
    va2 = VAlloc(1)
    gV.alloc(va2)
    g = gK
    a(f"s_load_dwordx2 s[{S_P0}:{S_P0 + 1}], s[0:1], {KARG['ckv']}")
    a(f"s_load_dwordx4 s[{S_P0 + 4}:{S_P0 + 7}], s[0:1], {KARG['wuk']}")
    a(f"s_load_dwordx2 s[{S_P0 + 2}:{S_P0 + 3}], s[0:1], {KARG['ws']}")
    a(f"s_load_dwordx2 s[52:53], s[0:1], {KARG['x']}")
    wave_ids(a, g)
    a(f"s_and_b32 s{S_T0}, s2, 7")
    a(f"s_lshr_b32 s{S_T1}, s2, 3")
    a(f"s_and_b32 s{S_T2}, s{S_T1}, 3")
    a(f"s_lshl_b32 s{S_T0}, s{S_T0}, 2")
    a(f"s_add_u32 s{S_T0}, s{S_T0}, s{S_T2}")
    a(f"s_lshr_b32 s{S_T1}, s{S_T1}, 2")
    a(f"s_lshl_b32 s{S_M0}, s{S_T1}, 8")
    a(f"s_and_b32 s{S_T2}, s{S_T0}, 15")
    a(f"s_lshl_b32 s{S_N0}, s{S_T2}, 8")
    a(f"s_lshr_b32 s{S_SPLIT}, s{S_T0}, 4")
    a("s_waitcnt lgkmcnt(0)")
    srd_from(a, S_A, S_P0, 0, 2048 * 1024)
    a(f"s_cmp_eq_u32 s{S_SPLIT}, 0")
    a(f"s_cselect_b32 s{S_W}, s{S_P0 + 4}, s{S_P0 + 6}")
    a(f"s_cselect_b32 s{S_W + 1}, s{S_P0 + 5}, s{S_P0 + 7}")
    a(f"s_mov_b32 s{S_W + 2}, 0x{512 * 8192:x}")
    a(f"s_mov_b32 s{S_W + 3}, 0x00020000")
    a(f"s_mov_b32 s{S_T1}, 0x{WS_V:x}")
    a(f"s_cselect_b32 s{S_T0}, 0x{WS_K:x}, s{S_T1}")
    a(f"s_add_u32 s{S_O}, s{S_P0 + 2}, s{S_T0}")
    a(f"s_addc_u32 s{S_O + 1}, s{S_P0 + 3}, 0")
    a(f"s_mov_b32 s{S_O + 2}, 0x{16 * MB:x}")
    a(f"s_mov_b32 s{S_O + 3}, 0x00020000")
    srd_from(a, S_X, 52, 0, 2048 * 1152)
    srd_from(a, S_Y, S_P0 + 2, WS_XN, 2048 * 1152)
    a(f"s_mov_b32 s{S_OFFA}, 0")
    a(f"s_mov_b32 s{S_OFFW}, 0")
    ln_base = g.fa[0][0]
    raw = ln_base
    vals = [ln_base + 8 + i for i in range(16)]
    tmp = ln_base + 24
    voff = ln_base + 30
    a(f"s_lshl_b32 s{S_T0}, s2, 3")
    a(f"s_add_u32 s{S_T0}, s{S_T0}, s{S_WAVE}")
    a(f"s_mul_i32 s{S_T3}, s{S_T0}, 1152")
    a(f"v_lshlrev_b32 v{voff}, 5, v{g.vL}")
    mask = (1 << 36) - 1
    set_exec(a, mask)
    a(f"buffer_load_dwordx4 {vr(raw, 4)}, v{voff}, s[{S_X}:{S_X + 3}], s{S_T3} offen")
    a(f"buffer_load_dwordx4 {vr(raw + 4, 4)}, v{voff}, s[{S_X}:{S_X + 3}], s{S_T3} offen offset:16")
    a("s_mov_b64 exec, -1")
    a(f"s_mov_b32 s38, s{S_T3}")
    g.setup_addrs()
    g.prologue_dma()
    a(f"s_waitcnt vmcnt({g.NS * g.D})")
    for i in range(8):
        a(f"v_lshlrev_b32 v{vals[2 * i]}, 16, v{raw + i}")
        a(f"v_and_b32 v{vals[2 * i + 1]}, 0xffff0000, v{raw + i}")
    emit_ln(a, vals, mask, tmp, [raw + i for i in range(8)])
    set_exec(a, mask)
    a(f"buffer_store_dwordx4 {vr(raw, 4)}, v{voff}, s[{S_Y}:{S_Y + 3}], s38 offen")
    a(f"buffer_store_dwordx4 {vr(raw + 4, 4)}, v{voff}, s[{S_Y}:{S_Y + 3}], s38 offen offset:16")
    a("s_mov_b64 exec, -1")
    a("s_nop 1")
    g.zero_acc()
    a(f"s_cmp_eq_u32 s{S_SPLIT}, 0")
    a("s_cbranch_scc0 L_kv_v")
    for gg in (gK, gV):
        if gg is gV:
            a.label("L_kv_v")
        gg.mainloop()
        T = gg.vT
        L = gg.vL
        a(f"s_lshr_b32 s{S_T0}, s{S_N0}, 7")
        a(f"s_add_u32 s{S_T0}, s{S_T0}, s{S_WN}")
        a(f"s_lshl_b32 s{S_T0}, s{S_T0}, 19")
        a(f"s_lshr_b32 s{S_T1}, s{S_M0}, 6")
        a(f"s_add_u32 s{S_T1}, s{S_T1}, s{S_WM}")
        a(f"s_lshl_b32 s{S_T1}, s{S_T1}, 14")
        a(f"s_add_u32 s{S_T0}, s{S_T0}, s{S_T1}")
        cst = 1024 if gg is gK else 2048
        a(f"v_bfe_u32 v{T}, v{L}, 4, 1")
        a(f"v_mul_u32_u24 v{T}, {cst}, v{T}")
        a(f"v_and_b32 v{T + 1}, 15, v{L}")
        a(f"v_lshl_add_u32 v{T}, v{T + 1}, 4, v{T}")
        a(f"v_lshrrev_b32 v{T + 1}, 5, v{L}")
        a(f"v_lshl_add_u32 v{T}, v{T + 1}, 3, v{T}")
        k = 0
        for tn in range(gg.TN):
            for tm in range(gg.TM):
                c = gg.acc[tn][tm]
                p = T + 2 + 2 * (k & 1)
                k += 1
                a(f"v_cvt_pk_bf16_f32 v{p}, v{c}, v{c + 1}")
                a(f"v_cvt_pk_bf16_f32 v{p + 1}, v{c + 2}, v{c + 3}")
                if gg is gK:
                    so, im = tn * 2048, tm * 256
                else:
                    so, im = tm * 4096, tn * 256
                a(f"s_add_u32 s{S_T1}, s{S_T0}, {so}")
                a(f"buffer_store_dwordx2 {vr(p, 2)}, v{T}, s[{S_O}:{S_O + 3}], s{S_T1} offen offset:{im}")
        a("s_endpgm")
    a.label(end)
    a("s_endpgm")
    a.end_kernel(name, max(va.hi, va2.hi))
    return (name, 256, 512, gK.LDS)


def gen_splitk(a, name, act_off, act_ld, wkey, klen, w_perm, out_off):
    a.begin_kernel(name)
    end = f"L_{name}_end"
    common_head(a, 256, end)
    g = Gemm(a, name[:4], 128, 144, 64, 4, 4, 1, 2, klen, act_ld, 1152, "P", w_perm=w_perm)
    va = VAlloc(1)
    g.alloc(va)
    a(f"s_load_dwordx2 s[{S_P0}:{S_P0 + 1}], s[0:1], {KARG[wkey]}")
    a(f"s_load_dwordx2 s[{S_P0 + 2}:{S_P0 + 3}], s[0:1], {KARG['ws']}")
    wave_ids(a, g)
    a(f"s_and_b32 s{S_SPLIT}, s2, 3")
    a(f"s_bfe_u32 s{S_T0}, s2, 0x10002")
    a(f"s_lshr_b32 s{S_T1}, s2, 3")
    a(f"s_and_b32 s{S_T2}, s{S_T1}, 3")
    a(f"s_mul_i32 s{S_N0}, s{S_T2}, 144")
    a(f"s_lshr_b32 s{S_T1}, s{S_T1}, 2")
    a(f"s_lshl_b32 s{S_T0}, s{S_T0}, 3")
    a(f"s_add_u32 s{S_T1}, s{S_T1}, s{S_T0}")
    a(f"s_lshl_b32 s{S_M0}, s{S_T1}, 7")
    a("s_waitcnt lgkmcnt(0)")
    srd_from(a, S_A, S_P0 + 2, act_off, 2048 * act_ld)
    srd_from(a, S_W, S_P0, 0, klen * 4 * 1152)
    srd_from(a, S_O, S_P0 + 2, out_off, 4 * 2048 * 2304)
    a(f"s_mul_i32 s{S_OFFA}, s{S_SPLIT}, {klen * 2}")
    a(f"s_mul_i32 s{S_OFFW}, s{S_SPLIT}, {klen * 1152}")
    g.setup_addrs()
    g.prologue_dma()
    g.zero_acc()
    g.mainloop()
    T, L = g.vT, g.vL
    a("s_barrier")
    a(f"s_mul_i32 s{S_T0}, s{S_WM}, 18432")
    a(f"v_lshlrev_b32 v{T}, 4, v{L}")
    a(f"v_add_u32 v{T}, s{S_T0}, v{T}")
    a(f"s_cmp_eq_u32 s{S_GK}, 0")
    a(f"s_cbranch_scc1 L_{name}_g0")
    j = 0
    for tn in range(g.TN):
        for tm in range(g.TM):
            a(f"ds_write_b128 v{T}, {vr(g.acc[tn][tm], 4)} offset:{j * 1024}")
            j += 1
    a("s_waitcnt lgkmcnt(0)")
    a("s_barrier")
    a("s_endpgm")
    a.label(f"L_{name}_g0")
    a("s_barrier")
    j = 0
    rd = []
    for tn in range(g.TN):
        for tm in range(g.TM):
            rd.append((g.acc[tn][tm], g.fw[j & 1][j >> 1] if (j >> 1) < g.TN else g.fa[j & 1][0]))
            a(f"ds_read_b128 {vr(rd[-1][1], 4)}, v{T} offset:{j * 1024}")
            j += 1
    a(f"s_mul_i32 s{S_T0}, s{S_SPLIT}, {2048 * 2304}")
    a(f"s_mul_i32 s{S_T1}, s{S_M0}, 2304")
    a(f"s_add_u32 s{S_T0}, s{S_T0}, s{S_T1}")
    a(f"s_lshl_b32 s{S_T1}, s{S_N0}, 2")
    a(f"s_add_u32 s{S_T0}, s{S_T0}, s{S_T1}")
    a(f"s_lshl_b32 s{S_T1}, s{S_WM}, 5")
    a(f"v_and_b32 v{T + 1}, 15, v{L}")
    a(f"v_add_u32 v{T + 1}, s{S_T1}, v{T + 1}")
    a(f"v_mul_u32_u24 v{T + 1}, 2304, v{T + 1}")
    a(f"v_lshrrev_b32 v{T + 2}, 4, v{L}")
    a(f"v_lshl_add_u32 v{T + 1}, v{T + 2}, 4, v{T + 1}")
    a(f"v_add_u32 v{T + 2}, {16 * 2304}, v{T + 1}")
    j = 0
    for tn in range(g.TN):
        for tm in range(g.TM):
            c, f = rd[j]
            a(f"s_waitcnt lgkmcnt({min(15, len(rd) - 1 - j)})")
            for q in range(4):
                a(f"v_add_f32 v{c + q}, v{c + q}, v{f + q}")
            a(f"buffer_store_dwordx4 {vr(c, 4)}, v{T + 1 + tm}, s[{S_O}:{S_O + 3}], s{S_T0} offen offset:{tn * 64}")
            j += 1
    a.label(end)
    a("s_endpgm")
    a.end_kernel(name, va.hi)
    return (name, 256, 512, g.LDS)


def gen_up(a):
    name = "mlp_up_kernel"
    a.begin_kernel(name)
    end = f"L_{name}_end"
    common_head(a, 256, end)
    g = Gemm(a, "up", 256, 144, 64, 3, 8, 1, 1, 576, 1152, 9216, "U", w_perm=True)
    va = VAlloc(1)
    g.alloc(va)
    bias = [va.get(2, 2) for _ in range(g.TN)]
    a(f"s_load_dwordx4 s[{S_P0 + 4}:{S_P0 + 7}], s[0:1], {KARG['w1']}")
    a(f"s_load_dwordx2 s[{S_P0 + 2}:{S_P0 + 3}], s[0:1], {KARG['ws']}")
    wave_ids(a, g)
    a(f"s_and_b32 s{S_T0}, s2, 7")
    a(f"s_lshr_b32 s{S_T1}, s2, 3")
    a(f"s_and_b32 s{S_T2}, s{S_T1}, 3")
    a(f"s_lshl_b32 s{S_T0}, s{S_T0}, 2")
    a(f"s_add_u32 s{S_T0}, s{S_T0}, s{S_T2}")
    a(f"s_lshr_b32 s{S_T1}, s{S_T1}, 2")
    a(f"s_lshl_b32 s{S_M0}, s{S_T1}, 8")
    a(f"s_mul_i32 s{S_N0}, s{S_T0}, 144")
    a("s_waitcnt lgkmcnt(0)")
    srd_from(a, S_A, S_P0 + 2, WS_HN, 2048 * 1152)
    srd_from(a, S_W, S_P0 + 4, 0, 576 * 9216)
    srd_from(a, S_O, S_P0 + 2, WS_ACT, 2048 * 9216)
    srd_from(a, S_X, S_P0 + 6, 0, 9216)
    a(f"s_mov_b32 s{S_OFFA}, 0")
    a(f"s_mov_b32 s{S_OFFW}, 0")
    T, L = g.vT, g.vL
    a(f"v_lshrrev_b32 v{T}, 4, v{L}")
    a(f"v_lshlrev_b32 v{T}, 3, v{T}")
    a(f"s_lshl_b32 s{S_T0}, s{S_N0}, 1")
    for tn in range(g.TN):
        a(f"buffer_load_dwordx2 {vr(bias[tn], 2)}, v{T}, s[{S_X}:{S_X + 3}], s{S_T0} offen offset:{tn * 32}")
    g.setup_addrs()
    g.prologue_dma()
    g.zero_acc()
    g.mainloop()
    a(f"s_mul_i32 s{S_T0}, s{S_M0}, 9216")
    a(f"s_lshl_b32 s{S_T1}, s{S_N0}, 1")
    a(f"s_add_u32 s{S_T0}, s{S_T0}, s{S_T1}")
    a(f"s_lshl_b32 s{S_T1}, s{S_WM}, 5")
    a(f"v_and_b32 v{T}, 15, v{L}")
    a(f"v_add_u32 v{T}, s{S_T1}, v{T}")
    a(f"v_mul_u32_u24 v{T}, 9216, v{T}")
    a(f"v_lshrrev_b32 v{T + 1}, 4, v{L}")
    a(f"v_lshl_add_u32 v{T}, v{T + 1}, 3, v{T}")
    a(f"v_add_u32 v{T + 1}, {16 * 9216}, v{T}")
    bf = g.fw[0][0]
    k = 0
    for tn in range(g.TN):
        b = bias[tn]
        a(f"v_lshlrev_b32 v{bf}, 16, v{b}")
        a(f"v_and_b32 v{bf + 1}, 0xffff0000, v{b}")
        a(f"v_lshlrev_b32 v{bf + 2}, 16, v{b + 1}")
        a(f"v_and_b32 v{bf + 3}, 0xffff0000, v{b + 1}")
        for tm in range(g.TM):
            c = g.acc[tn][tm]
            p = T + 2 + 2 * (k & 1)
            k += 1
            for q in range(4):
                a(f"v_add_f32 v{c + q}, v{c + q}, v{bf + q}")
            for q in range(4):
                a(f"v_max_f32 v{c + q}, 0, v{c + q}")
            for q in range(4):
                a(f"v_mul_f32 v{c + q}, v{c + q}, v{c + q}")
            a(f"v_cvt_pk_bf16_f32 v{p}, v{c}, v{c + 1}")
            a(f"v_cvt_pk_bf16_f32 v{p + 1}, v{c + 2}, v{c + 3}")
            a(f"buffer_store_dwordx2 {vr(p, 2)}, v{T + tm}, s[{S_O}:{S_O + 3}], s{S_T0} offen offset:{tn * 32}")
    a.label(end)
    a("s_endpgm")
    a.end_kernel(name, va.hi)
    return (name, 256, 512, g.LDS)


def gen_reduce(a, name, part_off, first):
    a.begin_kernel(name)
    end = f"L_{name}_end"
    common_head(a, 512, end)
    a(f"s_load_dwordx2 s[{S_P0 + 2}:{S_P0 + 3}], s[0:1], {KARG['ws']}")
    if first:
        a(f"s_load_dwordx2 s[{S_P0}:{S_P0 + 1}], s[0:1], {KARG['x']}")
    else:
        a(f"s_load_dwordx4 s[{S_P0 + 4}:{S_P0 + 7}], s[0:1], {KARG['b2']}")
    vL, vT = 1, 2
    a(f"v_lshrrev_b32 v{vT}, 6, v0")
    a(f"v_and_b32 v{vL}, 63, v0")
    a("s_nop 0")
    a(f"v_readfirstlane_b32 s{S_WAVE}, v{vT}")
    a("s_nop 3")
    a(f"s_lshl_b32 s{S_T0}, s2, 2")
    a(f"s_add_u32 s{S_T0}, s{S_T0}, s{S_WAVE}")
    a(f"s_mul_i32 s{S_T1}, s{S_T0}, 2304")
    a(f"s_mul_i32 s{S_T2}, s{S_T0}, 1152")
    a("s_waitcnt lgkmcnt(0)")
    srd_from(a, S_A, S_P0 + 2, part_off, 4 * 2048 * 2304)
    if first:
        srd_from(a, S_X, S_P0, 0, 2048 * 1152)
        srd_from(a, S_O, S_P0 + 2, WS_H, 2048 * 1152)
        srd_from(a, S_Y, S_P0 + 2, WS_HN, 2048 * 1152)
    else:
        srd_from(a, S_X, S_P0 + 2, WS_H, 2048 * 1152)
        srd_from(a, S_O, S_P0 + 6, 0, 2048 * 1152)
        srd_from(a, S_Y, S_P0 + 4, 0, 1152)
    vo4, vo2 = 4, 5
    a(f"v_mul_u32_u24 v{vo4}, 48, v{vL}")
    a(f"v_mul_u32_u24 v{vo2}, 24, v{vL}")
    P = 8
    X = 56
    B = 62
    V = 68
    TM = 80
    mask = (1 << 48) - 1
    set_exec(a, mask)
    for s in range(4):
        if s:
            a(f"s_add_u32 s{S_T1}, s{S_T1}, {2048 * 2304}")
        for j in range(3):
            a(f"buffer_load_dwordx4 {vr(P + s * 12 + j * 4, 4)}, v{vo4}, s[{S_A}:{S_A + 3}], s{S_T1} offen offset:{j * 16}")
    for j in range(3):
        a(f"buffer_load_dwordx2 {vr(X + 2 * j, 2)}, v{vo2}, s[{S_X}:{S_X + 3}], s{S_T2} offen offset:{j * 8}")
    if not first:
        for j in range(3):
            a(f"buffer_load_dwordx2 {vr(B + 2 * j, 2)}, v{vo2}, s[{S_Y}:{S_Y + 3}], 0 offen offset:{j * 8}")
    a("s_waitcnt vmcnt(0)")
    for i in range(12):
        a(f"v_add_f32 v{P + i}, v{P + i}, v{P + 12 + i}")
        a(f"v_add_f32 v{P + 24 + i}, v{P + 24 + i}, v{P + 36 + i}")
    for i in range(12):
        a(f"v_add_f32 v{P + i}, v{P + i}, v{P + 24 + i}")
    for i in range(6):
        s0, s1 = P + 2 * i, P + 2 * i + 1
        a(f"v_cvt_pk_bf16_f32 v{TM}, v{s0}, v{s1}")
        a(f"v_lshlrev_b32 v{s0}, 16, v{TM}")
        a(f"v_and_b32 v{s1}, 0xffff0000, v{TM}")
        if not first:
            a(f"v_lshlrev_b32 v{TM}, 16, v{B + i}")
            a(f"v_and_b32 v{TM + 1}, 0xffff0000, v{B + i}")
            a(f"v_add_f32 v{s0}, v{s0}, v{TM}")
            a(f"v_add_f32 v{s1}, v{s1}, v{TM + 1}")
            a(f"v_cvt_pk_bf16_f32 v{TM}, v{s0}, v{s1}")
            a(f"v_lshlrev_b32 v{s0}, 16, v{TM}")
            a(f"v_and_b32 v{s1}, 0xffff0000, v{TM}")
        a(f"v_lshlrev_b32 v{TM}, 16, v{X + i}")
        a(f"v_and_b32 v{TM + 1}, 0xffff0000, v{X + i}")
        a(f"v_add_f32 v{s0}, v{s0}, v{TM}")
        a(f"v_add_f32 v{s1}, v{s1}, v{TM + 1}")
        a(f"v_cvt_pk_bf16_f32 v{X + i}, v{s0}, v{s1}")
        if first:
            a(f"v_lshlrev_b32 v{V + 2 * i}, 16, v{X + i}")
            a(f"v_and_b32 v{V + 2 * i + 1}, 0xffff0000, v{X + i}")
    for j in range(3):
        a(f"buffer_store_dwordx2 {vr(X + 2 * j, 2)}, v{vo2}, s[{S_O}:{S_O + 3}], s{S_T2} offen offset:{j * 8}")
    a("s_mov_b64 exec, -1")
    if first:
        emit_ln(a, [V + i for i in range(12)], mask, TM, [B + i for i in range(6)])
        set_exec(a, mask)
        for j in range(3):
            a(f"buffer_store_dwordx2 {vr(B + 2 * j, 2)}, v{vo2}, s[{S_Y}:{S_Y + 3}], s{S_T2} offen offset:{j * 8}")
    a.label(end)
    a("s_endpgm")
    a.end_kernel(name, 88)
    return (name, 512, 256, 0)
```

```python
import sys
from asmlib import *
from layout import *
import gemm

NAME = "sequential_preLN__compressed_kv_cla__dense_activation_squared_relu__prompt"
HEAD = open(f"cdna_kernels/{NAME}.s.ref").read().split("; Override launch")[0]

def build(stages):
    a = Asm()
    launches = []
    if "kv" in stages: launches.append(gemm.gen_kv(a))
    if "attn" in stages:
        import attn
        launches.append(attn.gen_attn(a))
    if "oproj" in stages: launches.append(gemm.gen_splitk(a, "oproj_kernel", WS_CTX, 8192, "wo", 1024, False, WS_P1))
    if "red1" in stages: launches.append(gemm.gen_reduce(a, "red1_kernel", WS_P1, True))
    if "up" in stages: launches.append(gemm.gen_up(a))
    if "down" in stages: launches.append(gemm.gen_splitk(a, "down_kernel", WS_ACT, 9216, "w2", 1152, True, WS_P2))
    if "red2" in stages: launches.append(gemm.gen_reduce(a, "red2_kernel", WS_P2, False))
    out = [HEAD.rstrip()]
    for name, grid, block, lds in launches:
        out.append(f"; @launch kernel={name} grid=({grid},1,1) block=({block},1,1) lds={lds}")
    out.append('.amdgcn_target "amdgcn-amd-amdhsa--gfx950"')
    out.append(".text")
    out += a.L
    out += a.descriptors()
    return "\n".join(out) + "\n"

if __name__ == "__main__":
    stages = sys.argv[2].split(",") if len(sys.argv) > 2 else ["kv", "attn", "oproj", "red1", "up", "down", "red2"]
    dst = sys.argv[1] if len(sys.argv) > 1 else f"cdna_kernels/{NAME}.s"
    open(dst, "w").write(build(stages))
    print("wrote", dst)
```

```python
import struct

KARG = dict(x=0, ckv=8, wq=16, wuk=24, wuv=32, wo=40, bx=48, w1=56, b1=64, w2=72, b2=80, out=88, dbg=96, ws=104)


def f32bits(x):
    return struct.unpack("<I", struct.pack("<f", x))[0]


class Asm:
    def __init__(self):
        self.L = []
        self.uid = 0
        self.kernels = []

    def __call__(self, s):
        self.L.append("    " + s)

    def many(self, lst):
        for s in lst:
            self(s)

    def label(self, s):
        self.L.append(s + ":")

    def c(self, s):
        self.L.append("    ; " + s)

    def newlabel(self, p):
        self.uid += 1
        return f"L_{p}_{self.uid}"

    def begin_kernel(self, name):
        self.L.append(f".globl {name}")
        self.L.append(".p2align 8")
        self.L.append(f".type {name},@function")
        self.L.append(f"{name}:")

    def end_kernel(self, name, vgpr, sgpr=102):
        self.kernels.append((name, vgpr, sgpr))

    def descriptors(self):
        out = ['.section .rodata,"a"']
        for name, vgpr, sgpr in self.kernels:
            acc = (vgpr + 3) // 4 * 4
            out += [".p2align 6", f".amdhsa_kernel {name}",
                    f"  .amdhsa_next_free_vgpr {vgpr}",
                    f"  .amdhsa_next_free_sgpr {sgpr}",
                    f"  .amdhsa_accum_offset {acc}",
                    "  .amdhsa_group_segment_fixed_size 0",
                    "  .amdhsa_kernarg_size 112",
                    "  .amdhsa_user_sgpr_count 2",
                    "  .amdhsa_user_sgpr_kernarg_segment_ptr 1",
                    "  .amdhsa_system_sgpr_workgroup_id_x 1",
                    ".end_amdhsa_kernel"]
        return out


class VAlloc:
    def __init__(self, start=0):
        self.n = start
        self.hi = start

    def get(self, cnt=1, align=1):
        self.n = (self.n + align - 1) // align * align
        r = self.n
        self.n += cnt
        self.hi = max(self.hi, self.n)
        return r


def vr(b, n):
    return f"v[{b}:{b + n - 1}]" if n > 1 else f"v{b}"


def sr(b, n):
    return f"s[{b}:{b + n - 1}]" if n > 1 else f"s{b}"


def srd_from(a, d, ptr, off, nbytes):
    if off:
        a(f"s_add_u32 s{d}, s{ptr}, 0x{off:x}")
        a(f"s_addc_u32 s{d + 1}, s{ptr + 1}, 0")
    else:
        a(f"s_mov_b32 s{d}, s{ptr}")
        a(f"s_mov_b32 s{d + 1}, s{ptr + 1}")
    a(f"s_mov_b32 s{d + 2}, 0x{nbytes:x}")
    a(f"s_mov_b32 s{d + 3}, 0x00020000")


def wave_reduce_add(a, v, sdst):
    for ctl in ("row_shr:1 row_mask:0xf", "row_shr:2 row_mask:0xf", "row_shr:4 row_mask:0xf", "row_shr:8 row_mask:0xf",
                "row_bcast:15 row_mask:0xa", "row_bcast:31 row_mask:0xc"):
        a("s_nop 1")
        a(f"v_add_f32_dpp v{v}, v{v}, v{v} {ctl} bank_mask:0xf")
    a("s_nop 1")
    a(f"v_readlane_b32 s{sdst}, v{v}, 63")
    a("s_nop 3")


def interleave(a, main, fill, start=0, per=None):
    n = len(main)
    fill = list(fill)
    if not fill:
        a.many(main)
        return
    avail = max(n - start, 1)
    k = 0
    for i, m in enumerate(main):
        a(m)
        if i >= start:
            tgt = ((i - start + 1) * len(fill) + avail - 1) // avail if per is None else (i - start + 1) * per
            while k < min(tgt, len(fill)):
                f = fill[k]
                if isinstance(f, str):
                    a(f)
                else:
                    a.many(f)
                k += 1
    while k < len(fill):
        f = fill[k]
        if isinstance(f, str):
            a(f)
        else:
            a.many(f)
        k += 1


def set_exec(a, mask):
    a(f"s_mov_b32 exec_lo, 0x{mask & 0xffffffff:x}")
    a(f"s_mov_b32 exec_hi, 0x{mask >> 32:x}")


import os
STAMPS = os.environ.get("STAMPS", "0") == "1"
WS_DBG = 200 << 20
S_ST0 = 60


def stamp(a, i):
    if STAMPS:
        a(f"s_memtime s[{S_ST0 + 2 * i}:{S_ST0 + 2 * i + 1}]")
        if i == 0:
            a("s_memrealtime s[98:99]")


def stamp_dump(a, n, kidx, vtmp, USE_WAVE_S=None):
    if not STAMPS:
        return
    a("s_waitcnt vmcnt(0) lgkmcnt(0)")
    stamp(a, n)
    a("s_memrealtime s[96:97]")
    a("s_load_dwordx2 s[92:93], s[0:1], 104")
    a("s_waitcnt lgkmcnt(0)")
    a("s_sub_u32 s98, s96, s98")
    a(f"s_add_u32 s92, s92, 0x{WS_DBG + kidx * (1 << 20):x}")
    a("s_addc_u32 s93, s93, 0")
    a("s_mov_b32 s94, 0x100000")
    a("s_mov_b32 s95, 0x00020000")
    a(f"s_lshl_b32 s96, s2, 3")
    a(f"s_add_u32 s96, s96, s{USE_WAVE_S}")
    a("s_lshl_b32 s96, s96, 7")
    a(f"v_mov_b32 v{vtmp}, 0")
    a(f"v_mov_b32 v{vtmp + 1}, s98")
    a(f"s_mov_b64 exec, 1")
    a(f"buffer_store_dword v{vtmp + 1}, v{vtmp}, s[92:95], s96 offen offset:124")
    a(f"s_mov_b64 exec, -1")
    for i in range(n + 1):
        a(f"v_mov_b32 v{vtmp + 1}, s{S_ST0 + 2 * i}")
        a(f"s_mov_b64 exec, 1")
        a(f"buffer_store_dword v{vtmp + 1}, v{vtmp}, s[92:95], s96 offen offset:{4 * i}")
        a(f"s_mov_b64 exec, -1")
```

```python
from asmlib import *
from layout import *
import os

S_XN, S_WQ, S_K, S_V, S_C = 4, 8, 12, 16, 20
S_WAVE, S_W4, S_LD, S_HEAD, S_Q0, S_NT, S_NTM, S_T = 24, 25, 26, 27, 28, 29, 30, 31
S_KS, S_VS, S_KT, S_VT, S_HOFF, S_W4K = 32, 33, 34, 35, 36, 37
S_A, S_B, S_CC, S_D = 38, 39, 54, 55
S_M1, S_M2 = 40, 42
S_P0 = 44
S_THR, S_SC = 52, 53

vL, vKb, vVb, vKa, vVa, vl0, vl1, tA, tB, tC, vQm, vDMA, vW0 = 1, 2, 3, 4, 5, 6, 7, 8, 9, 10, 11, 12, 13
QF = 16
O = 48
S = [112, 144]
NEGM = 176
POOL = 192
NF = 16
PD = 8
KOFF, VOFF = 0, 65536
SCALE = 1.4426950408889634 * 128 ** -0.5
THR = 20.0
WG = int(os.environ.get('WG', '4'))
PKADD = os.environ.get('PKADD', '0') == '1'
QLA_ = int(os.environ.get('QLA', '4'))
EARLYB = os.environ.get('EARLYB', '1') == '1'
PREF = os.environ.get('PREF', '1') == '1'


def F(n):
    return POOL + 4 * (n % NF)


def kread(n, item):
    sub, kk = item >> 3, item & 7
    return f"ds_read_b128 {vr(F(n), 4)}, v{vKa} offset:{2 * kk * 1024 + sub * 512}"


def vread(n, item):
    G, dt = item >> 2, item & 3
    return f"ds_read_b128 {vr(F(n), 4)}, v{vVa} offset:{G * 4096 + dt * 512}"


def qk_mfma(n, item, Sn):
    sub, kk = item >> 3, item & 7
    d = vr(Sn + 16 * sub, 16)
    c = vr(NEGM, 16) if kk == 0 else d
    return f"v_mfma_f32_32x32x16_bf16 {d}, {vr(F(n), 4)}, {vr(QF + 4 * kk, 4)}, {c}"


def pv_mfma(n, item, Sc):
    G, dt = item >> 2, item & 3
    d = vr(O + 16 * dt, 16)
    p = Sc + 16 * (G >> 1) + 4 * (G & 1)
    return f"v_mfma_f32_32x32x16_bf16 {d}, {vr(F(n), 4)}, {vr(p, 4)}, {d}"


def softmax_list(Sc):
    out = []
    for G in range(4):
        b = Sc + 16 * (G >> 1) + 8 * (G & 1)
        p = Sc + 16 * (G >> 1) + 4 * (G & 1)
        for i in range(8):
            out.append(f"v_exp_f32 v{b + i}, v{b + i}")
        if PKADD:
            for i in range(4):
                out.append(f"v_pk_add_f32 v[{vl0}:{vl1}], v[{vl0}:{vl1}], v[{b + 2 * i}:{b + 2 * i + 1}]")
        else:
            for i in range(8):
                l = vl0 if i & 1 == 0 else vl1
                out.append(f"v_add_f32 v{l}, v{l}, v{b + i}")
        for i in range(4):
            out.append(f"v_cvt_pk_bf16_f32 v{p + i}, v{b + 2 * i}, v{b + 2 * i + 1}")
    return out


def max_list(Sn):
    out = []
    for sub, t in ((0, tA), (1, tB)):
        b = Sn + 16 * sub
        out.append(f"v_max3_f32 v{t}, v{b}, v{b + 1}, v{b + 2}")
        for i in range(3, 15, 2):
            out.append(f"v_max3_f32 v{t}, v{t}, v{b + i}, v{b + i + 1}")
        out.append(f"v_max_f32 v{t}, v{t}, v{b + 15}")
    out.append(f"v_max_f32 v{tA}, v{tA}, v{tB}")
    out.append(f"v_mov_b32 v{tB}, v{tA}")
    out.append("s_nop 1")
    out.append(f"v_permlane32_swap_b32 v{tA}, v{tB}")
    out.append("s_nop 1")
    out.append(f"v_max_f32 v{tA}, v{tA}, v{tB}")
    return out


OOL = []


def flush_ool(a):
    global OOL
    todo, OOL = OOL, []
    for f in todo:
        f()


def mask_block(a, Sn, tile_sreg_plus, nop=True):
    go, back = a.newlabel("mask"), a.newlabel("maskb")
    a(f"s_add_u32 s{S_A}, s{S_T}, {tile_sreg_plus + 1}")
    a(f"s_cmp_eq_u32 s{S_A}, s{S_NT}")
    a(f"s_cbranch_scc1 {go}")
    a.label(back)

    def body():
        a.label(go)
        if nop:
            a("s_nop 15")
        a(f"s_add_u32 s{S_A}, s{S_T}, {tile_sreg_plus}")
        a(f"s_lshl_b32 s{S_A}, s{S_A}, 6")
        a(f"v_subrev_u32 v{tB}, s{S_A}, v{vQm}")
        a(f"v_mov_b32 v{tC}, 0xff800000")
        regs = [(Sn + j, 32 * (j >> 4) + 8 * ((j & 15) >> 2) + (j & 3)) for j in range(32)]
        for i in range(0, 32, 3):
            grp = regs[i:i + 3]
            ms = ["vcc", f"s[{S_M1}:{S_M1 + 1}]", f"s[{S_M2}:{S_M2 + 1}]"]
            for (r, c), m in zip(grp, ms):
                a(f"v_cmp_gt_i32 {m}, {c}, v{tB}")
            if len(grp) < 3:
                a("s_nop 1")
            for (r, c), m in zip(grp, ms):
                a(f"v_cndmask_b32 v{r}, v{r}, v{tC}, {m}")
        a(f"s_branch {back}")
    OOL.append(body)


def mid_barrier(a, loader):
    if not loader:
        a("s_barrier")
        return
    go, back = a.newlabel("w0"), a.newlabel("w0b")
    a(f"s_add_u32 s{S_A}, s{S_T}, 4")
    a(f"s_cmp_ge_i32 s{S_A}, s{S_NTM}")
    a(f"s_cbranch_scc1 {go}")
    a.label(back)

    def body():
        a.label(go)
        a("s_waitcnt vmcnt(0)")
        a(f"s_branch {back}")
    OOL.append(body)
    a("s_waitcnt vmcnt(8)")
    a("s_barrier")
    issue_tile(a, True, a.newlabel("it"))
    issue_tile(a, False, a.newlabel("it"))


def issue_tile(a, isK, skip):
    st = S_KT if isK else S_VT
    srd = S_K if isK else S_V
    a(f"s_cmp_ge_u32 s{st}, s{S_NTM}")
    a(f"s_cbranch_scc1 {skip}")
    a(f"s_and_b32 s{S_A}, s{st}, 3")
    a(f"s_lshl_b32 s{S_A}, s{S_A}, 14")
    a(f"s_add_u32 s{S_A}, s{S_A}, s{S_W4K}")
    if isK:
        a(f"s_mov_b32 m0, s{S_A}")
    else:
        a(f"s_add_u32 m0, s{S_A}, 0x{VOFF:x}")
    a(f"s_lshl_b32 s{S_B}, s{st}, 14")
    a(f"s_add_u32 s{S_B}, s{S_B}, s{S_HOFF}")
    for i in range(4):
        a(f"buffer_load_dwordx4 v{vDMA}, s[{srd}:{srd + 3}], s{S_B} offen offset:{i * 1024} lds")
    a.label(skip)
    a(f"s_add_u32 s{st}, s{st}, 1")


def slots(a, mf, extras):
    for i, (pre, m, rd) in enumerate(mf):
        for x in pre:
            a(x)
        a(m)
        if rd:
            a(rd)
        for x in extras.get(i, []):
            a(x)


def spread(lst, first, nslots):
    ex = {}
    n = len(lst)
    for i, x in enumerate(lst):
        s = first + i * nslots // n
        ex.setdefault(s, []).append(x)
    return ex


def rescale_block(a, Sn):
    go, back = a.newlabel("rs"), a.newlabel("rsb")
    a(f"v_cmp_lt_f32 vcc, s{S_THR}, v{tA}")
    a("s_nop 1")
    a(f"s_cbranch_vccnz {go}")
    a.label(back)

    def body():
        a.label(go)
        a("s_nop 15")
        a(f"v_max_f32 v{tA}, 0, v{tA}")
        a(f"v_sub_f32 v{tB}, 0, v{tA}")
        a(f"v_exp_f32 v{tB}, v{tB}")
        a("s_nop 0")
        a(f"v_mul_f32 v{vl0}, v{vl0}, v{tB}")
        a(f"v_mul_f32 v{vl1}, v{vl1}, v{tB}")
        for i in range(64):
            a(f"v_mul_f32 v{O + i}, v{O + i}, v{tB}")
        for i in range(32):
            a(f"v_sub_f32 v{Sn + i}, v{Sn + i}, v{tA}")
        for i in range(16):
            a(f"v_sub_f32 v{NEGM + i}, v{NEGM + i}, v{tA}")
        a("s_nop 1")
        a(f"s_branch {back}")
    OOL.append(body)


def cstamp(a, i):
    if STAMPS and os.environ.get("CST", "0") == "1":
        l = a.newlabel("cs")
        a(f"s_cmp_lg_u32 s{S_T}, {int(os.environ.get('STT', '10'))}")
        a(f"s_cbranch_scc1 {l}")
        stamp(a, i)
        a.label(l)


def emit_iter(a, p, loader):
    Sc, Sn = S[p], S[p ^ 1]
    cstamp(a, 8)
    if STAMPS and os.environ.get("TRC", "0") == "1":
        a("s_memtime s[96:97]")
        a("s_waitcnt lgkmcnt(0)")
        a(f"v_mov_b32 v{tC}, s96")
        a(f"v_cmp_eq_u32 vcc, s{S_T}, v{vL}")
        a("s_nop 1")
        a(f"v_cndmask_b32 v15, v15, v{tC}, vcc")
    sm = softmax_list(Sc)
    ex = {}
    nG = len(sm) // 4
    for G in range(4):
        for k, v in spread(sm[nG * G:nG * G + nG], 6 * G, 6).items():
            ex.setdefault(k, []).extend(v)
    for k, v in spread(max_list(Sn), 24, 8).items():
        ex.setdefault(k, []).extend(v)
    def wt(n):
        return [f"s_waitcnt lgkmcnt({PD - WG})"] if n % WG == 0 else []
    mf = []
    for n in range(16):
        m = n + PD
        rd = kread(m, m) if m < 16 else vread(m, m - 16)
        mf.append((wt(n), qk_mfma(n, n, Sn), rd))
    a(f"v_add_u32 v{vVa}, s{S_VS}, v{vVb}")
    slots(a, mf, ex)
    cstamp(a, 9)
    mid_barrier(a, loader)
    cstamp(a, 10)
    a(f"v_add_u32 v{vKa}, s{S_KS}, v{vKb}")
    mf = []
    for n in range(16, 32):
        m = n + PD
        rd = vread(m, m - 16) if m < 32 else kread(m, m - 32)
        mf.append((wt(n), pv_mfma(n, n - 16, Sc), rd))
    ex2 = {k - 16: v for k, v in ex.items() if k >= 16}
    slots(a, mf[:8], {k: v for k, v in ex2.items() if k < 8})
    mask_block(a, Sn, 1, nop=False)
    slots(a, mf[8:], {k - 8: v for k, v in ex2.items() if k >= 8})
    a(f"s_add_u32 s{S_KS}, s{S_KS}, 0x4000")
    a(f"s_and_b32 s{S_KS}, s{S_KS}, 0xffff")
    a(f"s_add_u32 s{S_VS}, s{S_VS}, 0x4000")
    a(f"s_and_b32 s{S_VS}, s{S_VS}, 0xffff")
    cstamp(a, 11)
    rescale_block(a, Sn)
    cstamp(a, 12)
    a(f"s_add_u32 s{S_T}, s{S_T}, 1")


def emit_epilogue(a, pc, done, loader=False):
    Sc = S[pc]
    stamp(a, 5)
    if loader and EARLYB:
        mid_barrier(a, True)
        a(f"s_add_u32 s{S_T}, s{S_T}, 1")
    a("s_waitcnt lgkmcnt(0)")
    a(f"v_add_u32 v{vVa}, s{S_VS}, v{vVb}")
    for n in range(PD):
        a(vread(n, n))
    a.many(softmax_list(Sc))
    mf = []
    for n in range(16):
        m = n + PD
        rd = vread(m, m) if m < 16 else None
        w = min(PD - 1, 15 - n)
        mf.append(([f"s_waitcnt lgkmcnt({w})"], pv_mfma(n, n, Sc), rd))
    slots(a, mf, {})
    a(f"v_add_f32 v{vl0}, v{vl0}, v{vl1}")
    a(f"v_mov_b32 v{vl1}, v{vl0}")
    a("s_nop 1")
    a(f"v_permlane32_swap_b32 v{vl0}, v{vl1}")
    a("s_nop 1")
    a(f"v_add_f32 v{vl0}, v{vl0}, v{vl1}")
    a(f"v_rcp_f32 v{vl0}, v{vl0}")
    a(f"v_and_b32 v{tA}, 31, v{vL}")
    a(f"v_add_u32 v{tA}, s{S_Q0}, v{tA}")
    a(f"v_lshrrev_b32 v{tB}, 4, v{tA}")
    a(f"v_lshlrev_b32 v{tB}, 17, v{tB}")
    a(f"v_and_b32 v{tA}, 15, v{tA}")
    a(f"v_lshl_add_u32 v{tA}, v{tA}, 4, v{tB}")
    a(f"v_lshrrev_b32 v{tB}, 5, v{vL}")
    a(f"v_lshl_add_u32 v{tA}, v{tB}, 8, v{tA}")
    a(f"s_lshl_b32 s{S_A}, s{S_HEAD}, 12")
    a("s_nop 7")
    for j in range(8):
        b = O + 8 * j
        for i in range(8):
            a(f"v_mul_f32 v{b + i}, v{b + i}, v{vl0}")
        for i in range(4):
            a(f"v_cvt_pk_bf16_f32 v{b + i}, v{b + 2 * i}, v{b + 2 * i + 1}")
        a(f"buffer_store_dwordx4 {vr(b, 4)}, v{tA}, s[{S_C}:{S_C + 3}], s{S_A} offen offset:{(j >> 1) * 1024 + (j & 1) * 512}")
    a(f"s_branch {done}")


def gen_attn(a):
    name = "attn_kernel"
    a.begin_kernel(name)
    end = "L_attn_end"
    a("s_cmp_ge_u32 s2, 256")
    a(f"s_cbranch_scc1 {end}")
    stamp(a, 0)
    a(f"s_load_dwordx2 s[{S_P0}:{S_P0 + 1}], s[0:1], {KARG['wq']}")
    a(f"s_load_dwordx2 s[{S_P0 + 2}:{S_P0 + 3}], s[0:1], {KARG['ws']}")
    a(f"v_lshrrev_b32 v{tA}, 6, v0")
    a(f"v_and_b32 v{vL}, 63, v0")
    a("s_nop 0")
    a(f"v_readfirstlane_b32 s{S_WAVE}, v{tA}")
    a("s_nop 3")
    a(f"s_and_b32 s{S_W4}, s{S_WAVE}, 3")
    a(f"s_lshl_b32 s{S_W4K}, s{S_W4}, 12")
    a(f"s_and_b32 s{S_HEAD}, s2, 31")
    a(f"s_lshr_b32 s{S_A}, s2, 5")
    a(f"s_sub_u32 s{S_B}, 15, s{S_A}")
    a(f"s_lshl_b32 s{S_NTM}, s{S_B}, 1")
    a(f"s_add_u32 s{S_NTM}, s{S_NTM}, 2")
    a(f"s_cmp_lt_u32 s{S_WAVE}, 4")
    a(f"s_cselect_b32 s{S_LD}, 1, 0")
    a(f"s_cselect_b32 s{S_A}, s{S_A}, s{S_B}")
    a(f"s_lshl_b32 s{S_Q0}, s{S_A}, 7")
    a(f"s_lshl_b32 s{S_B}, s{S_W4}, 5")
    a(f"s_add_u32 s{S_Q0}, s{S_Q0}, s{S_B}")
    a(f"s_lshl_b32 s{S_NT}, s{S_A}, 1")
    a(f"s_lshr_b32 s{S_B}, s{S_W4}, 1")
    a(f"s_add_u32 s{S_NT}, s{S_NT}, s{S_B}")
    a(f"s_add_u32 s{S_NT}, s{S_NT}, 1")
    a(f"s_lshl_b32 s{S_HOFF}, s{S_HEAD}, 19")
    a(f"s_add_u32 s{S_HOFF}, s{S_HOFF}, s{S_W4K}")
    a(f"s_mov_b32 s{S_THR}, 0x{f32bits(THR):x}")
    a(f"s_mov_b32 s{S_SC}, 0x{f32bits(SCALE):x}")
    a("s_waitcnt lgkmcnt(0)")
    srd_from(a, S_XN, S_P0 + 2, WS_XN, 2048 * 1152)
    srd_from(a, S_WQ, S_P0, 0, 576 * 8192)
    srd_from(a, S_K, S_P0 + 2, WS_K, 16 * MB)
    srd_from(a, S_V, S_P0 + 2, WS_V, 16 * MB)
    srd_from(a, S_C, S_P0 + 2, WS_CTX, 16 * MB)
    vWd = vl0
    a(f"v_lshrrev_b32 v{vWd}, 4, v{vL}")
    a(f"v_lshlrev_b32 v{vWd}, 15, v{vWd}")
    a(f"v_and_b32 v{tB}, 15, v{vL}")
    a(f"v_lshl_add_u32 v{vWd}, v{tB}, 4, v{vWd}")
    a(f"v_lshlrev_b32 v{vDMA}, 4, v{vL}")
    a(f"s_lshr_b32 s{S_A}, s{S_WAVE}, 2")
    a(f"s_lshl_b32 s{S_A}, s{S_A}, 4")
    a(f"s_add_u32 s{S_A}, s{S_A}, s{S_W4}")
    a(f"s_lshl_b32 s{S_A}, s{S_A}, 13")
    a(f"s_lshl_b32 s{S_B}, s{S_HEAD}, 8")
    a(f"s_add_u32 s{S_A}, s{S_A}, s{S_B}")
    a(f"s_mul_i32 s{S_B}, s{S_WAVE}, 1088")
    a(f"s_lshr_b32 s{S_CC}, s{S_Q0}, 5")
    a(f"s_mul_i32 s{S_CC}, s{S_CC}, 36864")
    XR = [O + 4 * i for i in range(16)] + [NEGM + 4 * i for i in range(4)] + [S[0] + 4 * i for i in range(8)] + \
         [POOL + 32 + 4 * i for i in range(8)]
    R2 = 98304
    def blk_off(blk):
        return blk * 4352 if blk < 22 else R2 + (blk - 22) * 4352
    def qload(i):
        lo = i * 8704 if i < 11 else R2 + (i - 11) * 8704
        out = [f"s_add_u32 m0, s{S_B}, 0x{lo:x}", "s_nop 0",
               f"buffer_load_dwordx4 v{vWd}, s[{S_WQ}:{S_WQ + 3}], s{S_A} offen lds",
               f"s_add_u32 s{S_A}, s{S_A}, 0x{32 * 8192:x}"]
        for kk in (2 * i, 2 * i + 1):
            out.append(f"buffer_load_dwordx4 {vr(XR[kk], 4)}, v{vDMA}, s[{S_XN}:{S_XN + 3}], s{S_CC} offen offset:{(kk & 3) * 1024}")
        if i & 1:
            out.append(f"s_add_u32 s{S_CC}, s{S_CC}, 4096")
        return out
    QLA = QLA_
    for i in range(QLA):
        a.many(qload(i))
    a(f"v_and_b32 v{tB}, 31, v{vL}")
    a(f"v_add_u32 v{tB}, s{S_Q0}, v{tB}")
    a(f"v_lshrrev_b32 v{vQm}, 5, v{vL}")
    a(f"v_lshlrev_b32 v{vQm}, 2, v{vQm}")
    a(f"v_sub_u32 v{vQm}, v{tB}, v{vQm}")
    a(f"v_bfe_u32 v{tA}, v{vL}, 2, 2")
    a(f"v_mul_u32_u24 v{vW0}, 1088, v{tA}")
    a(f"v_lshrrev_b32 v{tA}, 5, v{vL}")
    a(f"v_lshl_add_u32 v{vW0}, v{tA}, 9, v{vW0}")
    a(f"v_bfe_u32 v{tA}, v{vL}, 4, 1")
    a(f"v_lshl_add_u32 v{vW0}, v{tA}, 5, v{vW0}")
    a(f"v_and_b32 v{tA}, 3, v{vL}")
    a(f"v_lshl_add_u32 v{vW0}, v{tA}, 3, v{vW0}")
    a(f"v_add_u32 v{vW0 + 1}, 0x10000, v{vW0}")
    a(f"v_add_u32 v{vW0 + 2}, 0x20000, v{vW0}")
    a(f"v_and_b32 v{tA}, 31, v{vL}")
    a(f"v_lshlrev_b32 v{tA}, 4, v{tA}")
    a(f"v_lshrrev_b32 v{tB}, 5, v{vL}")
    a(f"v_lshl_add_u32 v{vKb}, v{tB}, 10, v{tA}")
    a(f"v_lshl_add_u32 v{vVb}, v{tB}, 11, v{tA}")
    a(f"v_add_u32 v{vVb}, 0x{VOFF:x}, v{vVb}")
    QA = [QF, QF + 16, S[1], S[1] + 16]
    for r in QA:
        for i in range(16):
            a(f"v_mov_b32 v{r + i}, 0")
    a(f"s_mov_b32 s{S_KT}, 0")
    a(f"s_mov_b32 s{S_VT}, 0")
    stamp(a, 1)

    def wread(n):
        kk, dt = n >> 2, n & 3
        o = blk_off(kk) + dt * 64
        f = POOL + 4 * (n % 8)
        return [f"ds_read_b64_tr_b16 {vr(f, 2)}, v{vW0 + (o >> 16)} offset:{o & 0xffff}",
                f"ds_read_b64_tr_b16 {vr(f + 2, 2)}, v{vW0 + ((o + 256) >> 16)} offset:{(o + 256) & 0xffff}"]
    QPD = 6

    def qgroup(n0, n1, extra=()):
        extra = list(extra)
        for n in range(n0, n0 + QPD):
            a.many(wread(n))
        for n in range(n0, n1):
            kk, dt = n >> 2, n & 3
            w = min(QPD - 1, n1 - 1 - n) * 2
            a(f"s_waitcnt lgkmcnt({w})")
            c = vr(QA[dt], 16)
            a(f"v_mfma_f32_32x32x16_bf16 {c}, {vr(POOL + 4 * (n % 8), 4)}, {vr(XR[kk], 4)}, {c}")
            if n + QPD < n1:
                a.many(wread(n + QPD))
            if extra and (n - n0) % 4 == 1:
                a.many(extra.pop(0))
        for e in extra:
            a.many(e)
    issued = QLA
    groups = [(0, 1), (1, 2), (2, 4), (4, 6), (6, 8), (8, 11)]
    for gi, (p0, p1) in enumerate(groups):
        a(f"s_waitcnt vmcnt({3 * (issued - p1)})")
        a("s_barrier")
        if gi == 0:
            stamp(a, 2)
        nxt = min(18, p1 + QLA + (p1 - p0))
        ex = [qload(i) for i in range(issued, nxt)]
        issued = nxt
        qgroup(8 * p0, 8 * p1, ex)
    for i in range(issued, 18):
        a.many(qload(i))
    a("s_waitcnt vmcnt(0)")
    a("s_barrier")
    nl = a.newlabel("nold")
    a(f"s_cmp_eq_u32 s{S_LD}, 0")
    a(f"s_cbranch_scc1 {nl}")
    for isK in (True, True, True, False, True, False):
        issue_tile(a, isK, a.newlabel("it"))
    nl2 = a.newlabel("nold2")
    a(f"s_branch {nl2}")
    a.label(nl)
    if PREF:
        a(f"s_load_dwordx2 s[56:57], s[0:1], {KARG['wo']}")
        a(f"s_load_dwordx2 s[58:59], s[0:1], {KARG['w1']}")
        a(f"s_load_dwordx2 s[{S_P0}:{S_P0 + 1}], s[0:1], {KARG['w2']}")
        a(f"s_lshl_b32 s{S_A}, s2, 2")
        a(f"s_add_u32 s{S_A}, s{S_A}, s{S_W4}")
        a(f"s_lshl_b32 s{S_A}, s{S_A}, 13")
        a(f"v_lshlrev_b32 v{tA}, 7, v{vL}")
        a("s_waitcnt lgkmcnt(0)")
        for ptr, nb in ((56, 4096 * 1152), (58, 576 * 9216), (S_P0, 4608 * 1152)):
            srd_from(a, S_XN, ptr, 0, nb)
            a(f"buffer_load_dword v0, v{tA}, s[{S_XN}:{S_XN + 3}], s{S_A} offen")
    a.label(nl2)
    qgroup(88, 144)
    stamp(a, 3)
    a("s_nop 15")
    for G in range(8):
        src = QA[G >> 1] + 8 * (G & 1)
        for i in range(8):
            a(f"v_mul_f32 v{src + i}, s{S_SC}, v{src + i}")
        for i in range(4):
            a(f"v_cvt_pk_bf16_f32 v{QF + 4 * G + i}, v{src + 2 * i}, v{src + 2 * i + 1}")
    for i in range(64):
        a(f"v_mov_b32 v{O + i}, 0")
    for i in range(16):
        a(f"v_mov_b32 v{NEGM + i}, 0")
    a(f"v_mov_b32 v{vl0}, 0")
    a(f"v_mov_b32 v{vl1}, 0")
    a(f"v_mov_b32 v{vKa}, v{vKb}")
    a(f"s_mov_b32 s{S_T}, -1")
    a(f"s_mov_b32 s{S_KS}, 0x4000")
    a(f"s_mov_b32 s{S_VS}, 0")
    a("s_waitcnt vmcnt(20)")
    a("s_barrier")
    stamp(a, 4)
    a(f"s_cmp_eq_u32 s{S_LD}, 0")
    a("s_cbranch_scc1 L_attn_B")
    for loader in (True, False):
        tg = "A" if loader else "B"
        if not loader:
            a.label("L_attn_B")
        for n in range(PD):
            a(kread(n, n))
        mf = []
        for n in range(16):
            m = n + PD
            rd = kread(m, m) if m < 16 else None
            w = min(PD - 1, 15 - n)
            mf.append(([f"s_waitcnt lgkmcnt({w})"], qk_mfma(n, n, S[0]), rd))
        slots(a, mf, {})
        mid_barrier(a, loader)
        a(f"v_add_u32 v{vKa}, s{S_KS}, v{vKb}")
        for n in range(PD):
            a(kread(n, n))
        a(f"s_add_u32 s{S_KS}, s{S_KS}, 0x4000")
        a("s_nop 7")
        mask_block(a, S[0], 1)
        a.many(max_list(S[0]))
        for i in range(32):
            a(f"v_sub_f32 v{S[0] + i}, v{S[0] + i}, v{tA}")
        for i in range(16):
            a(f"v_sub_f32 v{NEGM + i}, 0, v{tA}")
        a(f"s_mov_b32 s{S_T}, 0")
        ep0, ep1, loop, done = [f"L_attn_{x}{tg}" for x in ("ep0", "ep1", "loop", "done")]
        a(f"s_cmp_eq_u32 s{S_NT}, 1")
        a(f"s_cbranch_scc1 {ep0}")
        a.label(loop)
        emit_iter(a, 0, loader)
        a(f"s_add_u32 s{S_A}, s{S_T}, 1")
        a(f"s_cmp_eq_u32 s{S_A}, s{S_NT}")
        a(f"s_cbranch_scc1 {ep1}")
        emit_iter(a, 1, loader)
        a(f"s_add_u32 s{S_A}, s{S_T}, 1")
        a(f"s_cmp_lg_u32 s{S_A}, s{S_NT}")
        a(f"s_cbranch_scc1 {loop}")
        a.label(ep0)
        emit_epilogue(a, 0, done, loader)
        a.label(ep1)
        emit_epilogue(a, 1, done, loader)
        a.label(done)
        stamp(a, 6)
        if loader:
            ll = "L_attn_ldloop"
            a.label(ll)
            a(f"s_add_u32 s{S_A}, s{S_T}, 1")
            a(f"s_cmp_ge_u32 s{S_A}, s{S_NTM}")
            a(f"s_cbranch_scc1 L_attn_finA")
            mid_barrier(a, True)
            a(f"s_add_u32 s{S_T}, s{S_T}, 1")
            a(f"s_branch {ll}")
            a.label("L_attn_finA")
        stamp(a, 7)
        stamp_dump(a, 13, 1, tA, S_WAVE)
        if STAMPS and os.environ.get("TRC", "0") == "1":
            a("s_lshl_b32 s96, s96, 1")
            a(f"s_add_u32 s96, s96, 0x40000")
            a(f"v_lshlrev_b32 v{tA}, 2, v{vL}")
            a(f"buffer_store_dword v15, v{tA}, s[92:95], s96 offen")
        a("s_endpgm")
        flush_ool(a)
    a.label(end)
    a("s_endpgm")
    a.end_kernel(name, 256)
    return (name, 256, 512, 98304 + 14 * 4352)
```

```python
from asmlib import *
from layout import *

S_A, S_W, S_O, S_X, S_Y = 4, 8, 12, 16, 40
S_WAVE, S_WM, S_WN, S_GK, S_M0, S_N0, S_SPLIT = 20, 21, 22, 23, 24, 25, 26
S_OFFA, S_OFFW, S_MA, S_MW, S_CNT = 27, 28, 29, 30, 31
S_T0, S_T1, S_T2, S_T3 = 32, 33, 34, 35
S_KST = 54
S_P0 = 44
import os
PRO = int(os.environ.get("PRO", "4"))
ROT = int(os.environ.get("ROT", "0"))


def emit_ln(a, vals, mask, va_tmp, out_pk):
    acc, mean, t, u, rinv, d = [va_tmp + i for i in range(6)]
    a(f"v_mov_b32 v{acc}, 0")
    set_exec(a, mask)
    for v in vals:
        a(f"v_add_f32 v{acc}, v{acc}, v{v}")
    a("s_mov_b64 exec, -1")
    wave_reduce_add(a, acc, 36)
    a(f"s_mov_b32 s37, 0x{f32bits(1.0 / 576):x}")
    a(f"v_mov_b32 v{mean}, s36")
    a(f"v_mul_f32 v{mean}, s37, v{mean}")
    a(f"v_mov_b32 v{acc}, 0")
    set_exec(a, mask)
    for v in vals:
        a(f"v_sub_f32 v{d}, v{v}, v{mean}")
        a(f"v_fmac_f32 v{acc}, v{d}, v{d}")
    a("s_mov_b64 exec, -1")
    wave_reduce_add(a, acc, 36)
    a(f"v_mov_b32 v{t}, s36")
    a(f"v_mul_f32 v{t}, s37, v{t}")
    a(f"v_cvt_pk_bf16_f32 v{t}, v{t}, v{mean}")
    a(f"v_and_b32 v{mean}, 0xffff0000, v{t}")
    a(f"v_lshlrev_b32 v{t}, 16, v{t}")
    a(f"v_add_f32 v{t}, 0x{f32bits(1e-5):x}, v{t}")
    a(f"v_cvt_pk_bf16_f32 v{t}, v{t}, v{t}")
    a(f"v_lshlrev_b32 v{t}, 16, v{t}")
    a(f"v_sqrt_f32 v{t}, v{t}")
    a("s_nop 0")
    a(f"v_cvt_pk_bf16_f32 v{t}, v{t}, v{t}")
    a(f"v_lshlrev_b32 v{t}, 16, v{t}")
    a(f"v_rcp_f32 v{rinv}, v{t}")
    for i in range(0, len(vals), 2):
        a(f"v_sub_f32 v{d}, v{vals[i]}, v{mean}")
        a(f"v_sub_f32 v{u}, v{vals[i + 1]}, v{mean}")
        a(f"v_cvt_pk_bf16_f32 v{d}, v{d}, v{u}")
        a(f"v_and_b32 v{u}, 0xffff0000, v{d}")
        a(f"v_lshlrev_b32 v{d}, 16, v{d}")
        a(f"v_mul_f32 v{d}, v{d}, v{rinv}")
        a(f"v_mul_f32 v{u}, v{u}, v{rinv}")
        a(f"v_cvt_pk_bf16_f32 v{out_pk[i // 2]}, v{d}, v{u}")


class Gemm:
    def __init__(self, a, tag, BM, BN, BKS, NS, GM, GN, GK, KLEN, lda, ldw, epi, w_perm=True, swap=False):
        self.a = a
        self.tag = tag
        self.BM, self.BN, self.BKS, self.NS = BM, BN, BKS, NS
        self.GM, self.GN, self.GK = GM, GN, GK
        assert GM * GN * GK == 8
        self.TM = BM // GM // 16
        self.TN = BN // GN // 16
        self.KSW = BKS // 32 // GK
        self.NST = KLEN // BKS
        assert KLEN % BKS == 0
        self.lda, self.ldw = lda, ldw
        self.epi = epi
        self.w_perm = w_perm
        self.swap = swap
        self.RB = BKS * 2
        self.WB = BN * 2
        self.NA = BM * self.RB // 1024 // 8
        if self.WB == 288:
            assert BKS == 64
            self.NW = 3
            self.WBYTES = BKS * 288
        else:
            assert self.WB == 512 and BKS == 32
            self.NW = 2
            self.WBYTES = 16 * 1056
        self.ABYTES = BM * self.RB
        self.SS = self.ABYTES + self.WBYTES
        self.LDS = self.SS * NS
        assert self.LDS <= 163840
        self.D = self.NA + self.NW

    def alloc(self, va):
        self.vL = va.get()
        self.vT = va.get(8)
        self.vA_off = [va.get() for _ in range(self.NA)]
        self.vW_off = [va.get() for _ in range(self.NW)]
        nb = (self.LDS + 65535) // 65536
        self.nb = nb
        nka = self.KSW if self.RB == 128 else 1
        self.vA_rd = [[va.get() for _ in range(nb)] for _ in range(nka)]
        self.vW_rd = [va.get() for _ in range(nb)]
        self.fa = [[va.get(4, 4) for _ in range(self.TM)] for _ in range(2)]
        self.fw = [[va.get(4, 4) for _ in range(self.TN)] for _ in range(2)]
        self.acc = [[va.get(4, 4) for _ in range(self.TM)] for _ in range(self.TN)]

    def setup_addrs(self):
        a = self.a
        L, T = self.vL, self.vT
        RB = self.RB
        CPR = RB // 16
        RPI = 1024 // RB
        cs = {4: 2, 8: 3}[CPR]
        for ia in range(self.NA):
            a(f"s_mul_i32 s{S_T0}, s{S_WAVE}, {self.NA * RPI}")
            a(f"s_add_u32 s{S_T0}, s{S_T0}, {ia * RPI}")
            a(f"v_lshrrev_b32 v{T}, {cs}, v{L}")
            a(f"v_add_u32 v{T}, s{S_T0}, v{T}")
            if RB == 128:
                a(f"v_bfe_u32 v{T + 1}, v{T}, 1, 3")
            else:
                a(f"v_bfe_u32 v{T + 1}, v{T}, 3, 1")
                a(f"v_mul_u32_u24 v{T + 1}, 3, v{T + 1}")
            a(f"v_and_b32 v{T + 2}, {CPR - 1}, v{L}")
            a(f"v_xor_b32 v{T + 2}, v{T + 2}, v{T + 1}")
            a(f"v_lshlrev_b32 v{T + 2}, 4, v{T + 2}")
            a(f"v_add_u32 v{T}, s{S_M0}, v{T}")
            a(f"s_mov_b32 s{S_T1}, {self.lda}")
            a(f"v_mul_lo_u32 v{T}, v{T}, s{S_T1}")
            a(f"v_add_u32 v{self.vA_off[ia]}, v{T}, v{T + 2}")
        a(f"s_mul_i32 s{S_MA}, s{S_WAVE}, {self.NA * 1024}")
        a(f"s_lshl_b32 s{S_T2}, s{S_N0}, 1")
        a(f"s_mov_b32 s{S_T1}, {self.ldw}")
        if self.WB == 288:
            for i in range(3):
                a(f"v_add_u32 v{T}, {64 * i}, v{L}")
                a(f"v_mul_u32_u24 v{T + 1}, 57, v{T}")
                a(f"v_lshrrev_b32 v{T + 1}, 10, v{T + 1}")
                a(f"v_mul_u32_u24 v{T + 2}, 18, v{T + 1}")
                a(f"v_sub_u32 v{T + 2}, v{T}, v{T + 2}")
                a(f"s_lshl_b32 s{S_T0}, s{S_WAVE}, 3")
                a(f"v_add_u32 v{T + 1}, s{S_T0}, v{T + 1}")
                if self.w_perm:
                    a(f"v_bfe_u32 v{T + 3}, v{T + 1}, 2, 1")
                    a(f"v_bfe_u32 v{T + 4}, v{T + 1}, 3, 1")
                    a(f"v_and_b32 v{T + 1}, 0xfffffff3, v{T + 1}")
                    a(f"v_lshl_or_b32 v{T + 1}, v{T + 3}, 3, v{T + 1}")
                    a(f"v_lshl_or_b32 v{T + 1}, v{T + 4}, 2, v{T + 1}")
                a(f"v_mul_lo_u32 v{T + 1}, v{T + 1}, s{S_T1}")
                a(f"v_lshl_add_u32 v{T + 1}, v{T + 2}, 4, v{T + 1}")
                a(f"v_add_u32 v{self.vW_off[i]}, s{S_T2}, v{T + 1}")
            a(f"s_mul_i32 s{S_MW}, s{S_WAVE}, {144 * 16}")
        else:
            for i in range(2):
                a(f"s_lshl_b32 s{S_T0}, s{S_WAVE}, 1")
                a(f"s_add_u32 s{S_T0}, s{S_T0}, {i}")
                a(f"s_and_b32 s{S_T3}, s{S_T0}, 3")
                a(f"s_lshr_b32 s{S_T0}, s{S_T0}, 2")
                a(f"s_lshl_b32 s{S_T0}, s{S_T0}, 3")
                a(f"s_add_u32 s{S_T0}, s{S_T0}, s{S_T3}")
                a(f"v_lshrrev_b32 v{T}, 5, v{L}")
                a(f"v_lshlrev_b32 v{T}, 2, v{T}")
                a(f"v_add_u32 v{T}, s{S_T0}, v{T}")
                a(f"v_mul_lo_u32 v{T}, v{T}, s{S_T1}")
                a(f"v_and_b32 v{T + 1}, 31, v{L}")
                a(f"v_lshl_add_u32 v{T}, v{T + 1}, 4, v{T}")
                a(f"v_add_u32 v{self.vW_off[i]}, s{S_T2}, v{T}")
            a(f"s_mul_i32 s{S_MW}, s{S_WAVE}, {2 * 1056}")
        a(f"s_mul_i32 s{S_T0}, s{S_WM}, {self.TM * 16}")
        a(f"v_and_b32 v{T}, 15, v{L}")
        a(f"v_add_u32 v{T}, s{S_T0}, v{T}")
        a(f"v_lshrrev_b32 v{T + 1}, 4, v{L}")
        r0 = self.vA_rd[0][0]
        if RB == 128:
            if self.GK == 2:
                a(f"s_lshl_b32 s{S_T1}, s{S_GK}, 2")
                a(f"v_add_u32 v{T + 1}, s{S_T1}, v{T + 1}")
            a(f"v_bfe_u32 v{T + 2}, v{T}, 1, 3")
            a(f"v_xor_b32 v{T + 1}, v{T + 1}, v{T + 2}")
            a(f"v_lshlrev_b32 v{T + 1}, 4, v{T + 1}")
            a(f"v_lshl_add_u32 v{r0}, v{T}, 7, v{T + 1}")
            if len(self.vA_rd) == 2:
                a(f"v_xor_b32 v{self.vA_rd[1][0]}, 64, v{r0}")
        else:
            a(f"v_bfe_u32 v{T + 2}, v{T}, 3, 1")
            a(f"v_mul_u32_u24 v{T + 2}, 3, v{T + 2}")
            a(f"v_xor_b32 v{T + 1}, v{T + 1}, v{T + 2}")
            a(f"v_lshlrev_b32 v{T + 1}, 4, v{T + 1}")
            a(f"v_lshl_add_u32 v{r0}, v{T}, 6, v{T + 1}")
        for rs in self.vA_rd:
            for k in range(1, self.nb):
                a(f"v_add_u32 v{rs[k]}, 0x{65536 * k:x}, v{rs[0]}")
        w0 = self.vW_rd[0]
        a(f"v_lshrrev_b32 v{T}, 4, v{L}")
        a(f"v_bfe_u32 v{T + 1}, v{L}, 2, 2")
        a(f"v_and_b32 v{T + 2}, 3, v{L}")
        if self.WB == 288:
            a(f"v_lshrrev_b32 v{T + 3}, 1, v{T}")
            a(f"v_lshl_add_u32 v{T + 1}, v{T + 3}, 4, v{T + 1}")
            a(f"v_and_b32 v{T + 3}, 1, v{T}")
            a(f"v_lshl_add_u32 v{T + 1}, v{T + 3}, 2, v{T + 1}")
            a(f"v_mul_u32_u24 v{T + 1}, 288, v{T + 1}")
            a(f"v_lshl_add_u32 v{w0}, v{T + 2}, 3, v{T + 1}")
            if self.GK == 2:
                a(f"s_mul_i32 s{S_T1}, s{S_GK}, {32 * 288}")
                a(f"v_add_u32 v{w0}, s{S_T1}, v{w0}")
        else:
            a(f"v_lshl_add_u32 v{T + 1}, v{T}, 2, v{T + 1}")
            a(f"v_mul_u32_u24 v{T + 1}, 1056, v{T + 1}")
            a(f"v_lshl_add_u32 v{w0}, v{T + 2}, 3, v{T + 1}")
        a(f"s_mul_i32 s{S_T1}, s{S_WN}, {self.TN * 32}")
        a(f"v_add_u32 v{w0}, s{S_T1}, v{w0}")
        for k in range(1, self.nb):
            a(f"v_add_u32 v{self.vW_rd[k]}, 0x{65536 * k:x}, v{w0}")

    def rotate(self, cm, cn):
        a = self.a
        cm, cn = cm * ROT, cn * ROT
        a(f"s_lshr_b32 s{S_T0}, s2, 3")
        a(f"s_and_b32 s{S_T1}, s{S_T0}, 3")
        a(f"s_lshr_b32 s{S_T0}, s{S_T0}, 2")
        a(f"s_mul_i32 s{S_T0}, s{S_T0}, {cm}")
        a(f"s_mul_i32 s{S_T1}, s{S_T1}, {cn}")
        a(f"s_add_u32 s{S_KST}, s{S_T0}, s{S_T1}")
        a(f"s_cmp_ge_u32 s{S_KST}, {self.NST}")
        a(f"s_cselect_b32 s{S_T0}, {self.NST}, 0")
        a(f"s_sub_u32 s{S_KST}, s{S_KST}, s{S_T0}")
        a(f"s_mul_i32 s{S_T0}, s{S_KST}, {self.BKS * 2}")
        a(f"s_add_u32 s{S_OFFA}, s{S_OFFA}, s{S_T0}")
        a(f"s_mul_i32 s{S_T0}, s{S_KST}, 0x{self.BKS * self.ldw:x}")
        a(f"s_add_u32 s{S_OFFW}, s{S_OFFW}, s{S_T0}")

    def zero_acc(self):
        for row in self.acc:
            for r in row:
                for j in range(4):
                    self.a(f"v_mov_b32 v{r + j}, 0")

    def dma_items(self, buf):
        base = buf * self.SS
        it = []
        for ia in range(self.NA):
            it.append([f"s_add_u32 m0, s{S_MA}, 0x{base + ia * 1024:x}", "s_nop 0",
                       f"buffer_load_dwordx4 v{self.vA_off[ia]}, s[{S_A}:{S_A + 3}], s{S_OFFA} offen lds"])
        wb = base + self.ABYTES
        for i in range(self.NW):
            step = 1024 if self.WB == 288 else 1056
            g = [f"s_add_u32 m0, s{S_MW}, 0x{wb + i * step:x}"]
            if self.WB == 288 and i == 2:
                g += ["s_mov_b64 exec, 0xffff",
                      f"buffer_load_dwordx4 v{self.vW_off[i]}, s[{S_W}:{S_W + 3}], s{S_OFFW} offen lds",
                      "s_mov_b64 exec, -1"]
            else:
                g += ["s_nop 0", f"buffer_load_dwordx4 v{self.vW_off[i]}, s[{S_W}:{S_W + 3}], s{S_OFFW} offen lds"]
            it.append(g)
        it.append([f"s_add_u32 s{S_OFFA}, s{S_OFFA}, {self.BKS * 2}",
                   f"s_add_u32 s{S_OFFW}, s{S_OFFW}, 0x{self.BKS * self.ldw:x}",
                   f"s_add_u32 s{S_KST}, s{S_KST}, 1",
                   f"s_cmp_eq_u32 s{S_KST}, {self.NST}",
                   f"s_cselect_b32 s{S_T2}, 0x{self.NST * self.BKS * 2:x}, 0",
                   f"s_cselect_b32 s{S_T3}, 0x{self.NST * self.BKS * self.ldw:x}, 0",
                   f"s_cselect_b32 s{S_KST}, 0, s{S_KST}",
                   f"s_sub_u32 s{S_OFFA}, s{S_OFFA}, s{S_T2}",
                   f"s_sub_u32 s{S_OFFW}, s{S_OFFW}, s{S_T3}"])
        return it

    def rd(self, regs, off):
        return regs[off >> 16], off & 0xffff

    def frag_reads(self, buf, ks, fb):
        base = buf * self.SS
        out = []
        ka = ks if len(self.vA_rd) == 2 else 0
        ksoff = ks * 32 * 288 if (self.WB == 288 and self.GK == 1) else 0
        sec = 8 * 288 if self.WB == 288 else 512
        for tn in range(self.TN):
            o = base + self.ABYTES + ksoff + tn * 32
            r, im = self.rd(self.vW_rd, o)
            out.append(f"ds_read_b64_tr_b16 {vr(self.fw[fb][tn], 2)}, v{r} offset:{im}")
            r, im = self.rd(self.vW_rd, o + sec)
            out.append(f"ds_read_b64_tr_b16 {vr(self.fw[fb][tn] + 2, 2)}, v{r} offset:{im}")
            if tn == 0:
                for tm in range(self.TM):
                    r, im = self.rd(self.vA_rd[ka], base + tm * 16 * self.RB)
                    out.append(f"ds_read_b128 {vr(self.fa[fb][tm], 4)}, v{r} offset:{im}")
        return out

    def mfmas(self, fb):
        out = []
        for tn in range(self.TN):
            for tm in range(self.TM):
                c = vr(self.acc[tn][tm], 4)
                w = vr(self.fw[fb][tn], 4)
                x = vr(self.fa[fb][tm], 4)
                if self.swap:
                    out.append(f"v_mfma_f32_16x16x32_bf16 {c}, {x}, {w}, {c}")
                else:
                    out.append(f"v_mfma_f32_16x16x32_bf16 {c}, {w}, {x}, {c}")
        return out

    def stage(self, s_buf, par, issue, vm, has_next):
        a = self.a
        for ks in range(self.KSW):
            last = ks == self.KSW - 1
            a("s_waitcnt lgkmcnt(0)")
            fill = []
            if last:
                if has_next:
                    a(f"s_waitcnt vmcnt({vm})")
                    a("s_barrier")
                    fill += self.frag_reads((s_buf + 1) % self.NS, 0, par ^ 1)
                    if issue:
                        d = self.dma_items(s_buf)
                        f2 = []
                        step = max(1, len(fill) // len(d))
                        di = 0
                        for i, f in enumerate(fill):
                            f2.append(f)
                            if i % step == step - 1 and di < len(d):
                                f2.append(d[di]); di += 1
                        f2 += d[di:]
                        fill = f2
            else:
                fill += self.frag_reads(s_buf, ks + 1, par ^ 1)
            interleave(a, self.mfmas(par), fill)
            par ^= 1
        return par

    def mainloop(self):
        a = self.a
        NS, NST, D = self.NS, self.NST, self.D
        stamp(a, 1)
        a(f"s_waitcnt vmcnt({(PRO - 1) * D})")
        a("s_barrier")
        stamp(a, 2)
        a.many(self.frag_reads(0, 0, 0))
        for b in range(PRO, NS):
            for gg in self.dma_items(b):
                a.many(gg)
        par = 0
        nmain = NST - NS
        r = nmain % NS
        s = 0
        for _ in range(r):
            par = self.stage(s % NS, par, True, (NS - 2) * D, True)
            s += 1
        trips = (nmain - r) // NS
        if trips > 0:
            assert (NS * self.KSW) % 2 == 0
            lab = a.newlabel(self.tag + "_loop")
            a(f"s_mov_b32 s{S_CNT}, {trips}")
            a.label(lab)
            for i in range(NS):
                par = self.stage((s + i) % NS, par, True, (NS - 2) * D, True)
            a(f"s_sub_u32 s{S_CNT}, s{S_CNT}, 1")
            a(f"s_cmp_lg_u32 s{S_CNT}, 0")
            a(f"s_cbranch_scc1 {lab}")
            s += trips * NS
        while s < NST:
            vm = (min(s + NS - 1, NST - 1) - (s + 1)) * D if s + 1 < NST else 0
            par = self.stage(s % NS, par, False, vm, s + 1 < NST)
            s += 1
        a("s_nop 15")
        stamp(a, 3)

    def prologue_dma(self):
        for b in range(PRO):
            for g in self.dma_items(b):
                self.a.many(g)


def common_head(a, nwg, endlab):
    a(f"s_cmp_ge_u32 s2, {nwg}")
    a(f"s_cbranch_scc1 {endlab}")
    stamp(a, 0)


def wave_ids(a, g):
    a(f"v_lshrrev_b32 v{g.vT}, 6, v0")
    a(f"v_and_b32 v{g.vL}, 63, v0")
    a("s_nop 0")
    a(f"v_readfirstlane_b32 s{S_WAVE}, v{g.vT}")
    a("s_nop 3")
    gm = g.GM.bit_length() - 1
    gn = g.GN.bit_length() - 1
    a(f"s_and_b32 s{S_WM}, s{S_WAVE}, {g.GM - 1}")
    a(f"s_lshr_b32 s{S_T0}, s{S_WAVE}, {gm}")
    a(f"s_and_b32 s{S_WN}, s{S_T0}, {g.GN - 1}")
    a(f"s_lshr_b32 s{S_GK}, s{S_T0}, {gn}")


def gen_kv(a):
    name = "kv_proj_kernel"
    a.begin_kernel(name)
    end = "L_kv_end"
    common_head(a, 256, end)
    gK = Gemm(a, "kvk", 256, 256, 32, 4, 4, 2, 1, 512, 1024, 8192, "K", swap=False)
    gV = Gemm(a, "kvv", 256, 256, 32, 4, 4, 2, 1, 512, 1024, 8192, "V", swap=True)
    va = VAlloc(1)
    gK.alloc(va)
    va2 = VAlloc(1)
    gV.alloc(va2)
    g = gK
    a(f"s_load_dwordx2 s[{S_P0}:{S_P0 + 1}], s[0:1], {KARG['ckv']}")
    a(f"s_load_dwordx4 s[{S_P0 + 4}:{S_P0 + 7}], s[0:1], {KARG['wuk']}")
    a(f"s_load_dwordx2 s[{S_P0 + 2}:{S_P0 + 3}], s[0:1], {KARG['ws']}")
    a(f"s_load_dwordx2 s[52:53], s[0:1], {KARG['x']}")
    wave_ids(a, g)
    a(f"s_and_b32 s{S_T0}, s2, 7")
    a(f"s_lshr_b32 s{S_T1}, s2, 3")
    a(f"s_and_b32 s{S_T2}, s{S_T1}, 3")
    a(f"s_lshl_b32 s{S_T0}, s{S_T0}, 2")
    a(f"s_add_u32 s{S_T0}, s{S_T0}, s{S_T2}")
    a(f"s_lshr_b32 s{S_T1}, s{S_T1}, 2")
    a(f"s_lshl_b32 s{S_M0}, s{S_T1}, 8")
    a(f"s_and_b32 s{S_T2}, s{S_T0}, 15")
    a(f"s_lshl_b32 s{S_N0}, s{S_T2}, 8")
    a(f"s_lshr_b32 s{S_SPLIT}, s{S_T0}, 4")
    a("s_waitcnt lgkmcnt(0)")
    srd_from(a, S_A, S_P0, 0, 2048 * 1024)
    a(f"s_cmp_eq_u32 s{S_SPLIT}, 0")
    a(f"s_cselect_b32 s{S_W}, s{S_P0 + 4}, s{S_P0 + 6}")
    a(f"s_cselect_b32 s{S_W + 1}, s{S_P0 + 5}, s{S_P0 + 7}")
    a(f"s_mov_b32 s{S_W + 2}, 0x{512 * 8192:x}")
    a(f"s_mov_b32 s{S_W + 3}, 0x00020000")
    a(f"s_mov_b32 s{S_T1}, 0x{WS_V:x}")
    a(f"s_cselect_b32 s{S_T0}, 0x{WS_K:x}, s{S_T1}")
    a(f"s_add_u32 s{S_O}, s{S_P0 + 2}, s{S_T0}")
    a(f"s_addc_u32 s{S_O + 1}, s{S_P0 + 3}, 0")
    a(f"s_mov_b32 s{S_O + 2}, 0x{16 * MB:x}")
    a(f"s_mov_b32 s{S_O + 3}, 0x00020000")
    srd_from(a, S_X, 52, 0, 2048 * 1152)
    srd_from(a, S_Y, S_P0 + 2, WS_XN, 2048 * 1152)
    a(f"s_mov_b32 s{S_OFFA}, 0")
    a(f"s_mov_b32 s{S_OFFW}, 0")
    g.rotate(2, 5)
    ln_base = g.fa[0][0]
    raw = ln_base
    vals = [ln_base + 8 + i for i in range(16)]
    tmp = ln_base + 24
    voff = ln_base + 30
    a(f"s_lshl_b32 s{S_T0}, s2, 3")
    a(f"s_add_u32 s{S_T0}, s{S_T0}, s{S_WAVE}")
    a(f"s_mul_i32 s{S_T3}, s{S_T0}, 1152")
    a(f"v_lshlrev_b32 v{voff}, 5, v{g.vL}")
    mask = (1 << 36) - 1
    set_exec(a, mask)
    a(f"buffer_load_dwordx4 {vr(raw, 4)}, v{voff}, s[{S_X}:{S_X + 3}], s{S_T3} offen")
    a(f"buffer_load_dwordx4 {vr(raw + 4, 4)}, v{voff}, s[{S_X}:{S_X + 3}], s{S_T3} offen offset:16")
    a("s_mov_b64 exec, -1")
    a(f"s_lshr_b32 s38, s{S_T0}, 5")
    a(f"s_mul_i32 s38, s38, 36864")
    a(f"s_and_b32 s39, s{S_T0}, 31")
    a(f"s_lshl_b32 s39, s39, 4")
    a(f"s_add_u32 s38, s38, s39")
    g.setup_addrs()
    g.prologue_dma()
    if os.environ.get('PREF', '1') == '1':
        vd = max(va.hi, va2.hi)
        va.get()
        a(f"s_load_dwordx2 s[56:57], s[0:1], {KARG['wq']}")
        a(f"s_lshl_b32 s{S_T0}, s2, 3")
        a(f"s_add_u32 s{S_T0}, s{S_T0}, s{S_WAVE}")
        a(f"s_lshl_b32 s{S_T0}, s{S_T0}, 13")
        a(f"v_lshlrev_b32 v{g.vT}, 7, v{g.vL}")
        a("s_waitcnt lgkmcnt(0)")
        srd_from(a, S_X, 56, 0, 576 * 8192)
        a(f"buffer_load_dword v{vd}, v{g.vT}, s[{S_X}:{S_X + 3}], s{S_T0} offen")
        a(f"s_waitcnt vmcnt({PRO * g.D + 1})")
    else:
        a(f"s_waitcnt vmcnt({PRO * g.D})")
    for i in range(8):
        a(f"v_lshlrev_b32 v{vals[2 * i]}, 16, v{raw + i}")
        a(f"v_and_b32 v{vals[2 * i + 1]}, 0xffff0000, v{raw + i}")
    emit_ln(a, vals, mask, tmp, [raw + i for i in range(8)])
    set_exec(a, mask)
    a(f"v_lshlrev_b32 v{voff}, 10, v{g.vL}")
    a(f"buffer_store_dwordx4 {vr(raw, 4)}, v{voff}, s[{S_Y}:{S_Y + 3}], s38 offen")
    a(f"buffer_store_dwordx4 {vr(raw + 4, 4)}, v{voff}, s[{S_Y}:{S_Y + 3}], s38 offen offset:512")
    a("s_mov_b64 exec, -1")
    a("s_nop 1")
    g.zero_acc()
    a(f"s_cmp_eq_u32 s{S_SPLIT}, 0")
    a("s_cbranch_scc0 L_kv_v")
    for gg in (gK, gV):
        if gg is gV:
            a.label("L_kv_v")
        gg.mainloop()
        T = gg.vT
        L = gg.vL
        a(f"s_lshr_b32 s{S_T0}, s{S_N0}, 7")
        a(f"s_add_u32 s{S_T0}, s{S_T0}, s{S_WN}")
        a(f"s_lshl_b32 s{S_T0}, s{S_T0}, 19")
        a(f"s_lshr_b32 s{S_T1}, s{S_M0}, 6")
        a(f"s_add_u32 s{S_T1}, s{S_T1}, s{S_WM}")
        a(f"s_lshl_b32 s{S_T1}, s{S_T1}, 14")
        a(f"s_add_u32 s{S_T0}, s{S_T0}, s{S_T1}")
        cst = 1024 if gg is gK else 2048
        a(f"v_bfe_u32 v{T}, v{L}, 4, 1")
        a(f"v_mul_u32_u24 v{T}, {cst}, v{T}")
        a(f"v_and_b32 v{T + 1}, 15, v{L}")
        a(f"v_lshl_add_u32 v{T}, v{T + 1}, 4, v{T}")
        a(f"v_lshrrev_b32 v{T + 1}, 5, v{L}")
        a(f"v_lshl_add_u32 v{T}, v{T + 1}, 3, v{T}")
        k = 0
        for tn in range(gg.TN):
            for tm in range(gg.TM):
                c = gg.acc[tn][tm]
                p = T + 2 + 2 * (k & 1)
                k += 1
                a(f"v_cvt_pk_bf16_f32 v{p}, v{c}, v{c + 1}")
                a(f"v_cvt_pk_bf16_f32 v{p + 1}, v{c + 2}, v{c + 3}")
                if gg is gK:
                    so, im = tn * 2048, tm * 256
                else:
                    so, im = tm * 4096, tn * 256
                a(f"s_add_u32 s{S_T1}, s{S_T0}, {so}")
                a(f"buffer_store_dwordx2 {vr(p, 2)}, v{T}, s[{S_O}:{S_O + 3}], s{S_T1} offen offset:{im}")
        stamp(a, 4)
        stamp_dump(a, 5, 0, T, S_WAVE)
        a("s_endpgm")
    a.label(end)
    a("s_endpgm")
    a.end_kernel(name, max(va.hi, va2.hi))
    return (name, 256, 512, gK.LDS)


def gen_splitk(a, name, act_off, act_ld, wkey, klen, w_perm, out_off):
    a.begin_kernel(name)
    end = f"L_{name}_end"
    common_head(a, 256, end)
    g = Gemm(a, name[:4], 128, 144, 64, 4, 4, 1, 2, klen, act_ld, 1152, "P", w_perm=w_perm)
    va = VAlloc(1)
    g.alloc(va)
    a(f"s_load_dwordx2 s[{S_P0}:{S_P0 + 1}], s[0:1], {KARG[wkey]}")
    a(f"s_load_dwordx2 s[{S_P0 + 2}:{S_P0 + 3}], s[0:1], {KARG['ws']}")
    wave_ids(a, g)
    a(f"s_and_b32 s{S_SPLIT}, s2, 3")
    a(f"s_bfe_u32 s{S_T0}, s2, 0x10002")
    a(f"s_lshr_b32 s{S_T1}, s2, 3")
    a(f"s_and_b32 s{S_T2}, s{S_T1}, 3")
    a(f"s_mul_i32 s{S_N0}, s{S_T2}, 144")
    a(f"s_lshr_b32 s{S_T1}, s{S_T1}, 2")
    a(f"s_lshl_b32 s{S_T0}, s{S_T0}, 3")
    a(f"s_add_u32 s{S_T1}, s{S_T1}, s{S_T0}")
    a(f"s_lshl_b32 s{S_M0}, s{S_T1}, 7")
    a("s_waitcnt lgkmcnt(0)")
    srd_from(a, S_A, S_P0 + 2, act_off, 2048 * act_ld)
    srd_from(a, S_W, S_P0, 0, klen * 4 * 1152)
    srd_from(a, S_O, S_P0 + 2, out_off, 4 * 2048 * 2304)
    a(f"s_mul_i32 s{S_OFFA}, s{S_SPLIT}, {klen * 2}")
    a(f"s_mul_i32 s{S_OFFW}, s{S_SPLIT}, {klen * 1152}")
    g.rotate(2, 5)
    g.setup_addrs()
    g.prologue_dma()
    g.zero_acc()
    g.mainloop()
    T, L = g.vT, g.vL
    a("s_barrier")
    a(f"s_mul_i32 s{S_T0}, s{S_WM}, 18432")
    a(f"v_lshlrev_b32 v{T}, 4, v{L}")
    a(f"v_add_u32 v{T}, s{S_T0}, v{T}")
    a(f"s_cmp_eq_u32 s{S_GK}, 0")
    a(f"s_cbranch_scc1 L_{name}_g0")
    j = 0
    for tn in range(g.TN):
        for tm in range(g.TM):
            a(f"ds_write_b128 v{T}, {vr(g.acc[tn][tm], 4)} offset:{j * 1024}")
            j += 1
    a("s_waitcnt lgkmcnt(0)")
    a("s_barrier")
    a("s_endpgm")
    a.label(f"L_{name}_g0")
    a("s_barrier")
    j = 0
    rd = []
    for tn in range(g.TN):
        for tm in range(g.TM):
            rd.append((g.acc[tn][tm], g.fw[j & 1][j >> 1] if (j >> 1) < g.TN else g.fa[j & 1][0]))
            a(f"ds_read_b128 {vr(rd[-1][1], 4)}, v{T} offset:{j * 1024}")
            j += 1
    a(f"s_mul_i32 s{S_T0}, s{S_SPLIT}, {2048 * 2304}")
    a(f"s_mul_i32 s{S_T1}, s{S_M0}, 2304")
    a(f"s_add_u32 s{S_T0}, s{S_T0}, s{S_T1}")
    a(f"s_lshl_b32 s{S_T1}, s{S_N0}, 2")
    a(f"s_add_u32 s{S_T0}, s{S_T0}, s{S_T1}")
    a(f"s_lshl_b32 s{S_T1}, s{S_WM}, 5")
    a(f"v_and_b32 v{T + 1}, 15, v{L}")
    a(f"v_add_u32 v{T + 1}, s{S_T1}, v{T + 1}")
    a(f"v_mul_u32_u24 v{T + 1}, 2304, v{T + 1}")
    a(f"v_lshrrev_b32 v{T + 2}, 4, v{L}")
    a(f"v_lshl_add_u32 v{T + 1}, v{T + 2}, 4, v{T + 1}")
    a(f"v_add_u32 v{T + 2}, {16 * 2304}, v{T + 1}")
    j = 0
    for tn in range(g.TN):
        for tm in range(g.TM):
            c, f = rd[j]
            a(f"s_waitcnt lgkmcnt({min(15, len(rd) - 1 - j)})")
            for q in range(4):
                a(f"v_add_f32 v{c + q}, v{c + q}, v{f + q}")
            a(f"buffer_store_dwordx4 {vr(c, 4)}, v{T + 1 + tm}, s[{S_O}:{S_O + 3}], s{S_T0} offen offset:{tn * 64}")
            j += 1
    stamp(a, 4)
    stamp_dump(a, 5, 2 if name.startswith("oproj") else 5, T, S_WAVE)
    a.label(end)
    a("s_endpgm")
    a.end_kernel(name, va.hi)
    return (name, 256, 512, g.LDS)


def gen_up(a):
    name = "mlp_up_kernel"
    a.begin_kernel(name)
    end = f"L_{name}_end"
    common_head(a, 256, end)
    g = Gemm(a, "up", 256, 144, 64, 3, 8, 1, 1, 576, 1152, 9216, "U", w_perm=True)
    va = VAlloc(1)
    g.alloc(va)
    bias = [va.get(2, 2) for _ in range(g.TN)]
    a(f"s_load_dwordx4 s[{S_P0 + 4}:{S_P0 + 7}], s[0:1], {KARG['w1']}")
    a(f"s_load_dwordx2 s[{S_P0 + 2}:{S_P0 + 3}], s[0:1], {KARG['ws']}")
    wave_ids(a, g)
    a(f"s_and_b32 s{S_T0}, s2, 7")
    a(f"s_lshr_b32 s{S_T1}, s2, 3")
    a(f"s_and_b32 s{S_T2}, s{S_T1}, 3")
    a(f"s_lshl_b32 s{S_T0}, s{S_T0}, 2")
    a(f"s_add_u32 s{S_T0}, s{S_T0}, s{S_T2}")
    a(f"s_lshr_b32 s{S_T1}, s{S_T1}, 2")
    a(f"s_lshl_b32 s{S_M0}, s{S_T1}, 8")
    a(f"s_mul_i32 s{S_N0}, s{S_T0}, 144")
    a("s_waitcnt lgkmcnt(0)")
    srd_from(a, S_A, S_P0 + 2, WS_HN, 2048 * 1152)
    srd_from(a, S_W, S_P0 + 4, 0, 576 * 9216)
    srd_from(a, S_O, S_P0 + 2, WS_ACT, 2048 * 9216)
    srd_from(a, S_X, S_P0 + 6, 0, 9216)
    a(f"s_mov_b32 s{S_OFFA}, 0")
    a(f"s_mov_b32 s{S_OFFW}, 0")
    g.rotate(1, 2)
    T, L = g.vT, g.vL
    a(f"v_lshrrev_b32 v{T}, 4, v{L}")
    a(f"v_lshlrev_b32 v{T}, 3, v{T}")
    a(f"s_lshl_b32 s{S_T0}, s{S_N0}, 1")
    for tn in range(g.TN):
        a(f"buffer_load_dwordx2 {vr(bias[tn], 2)}, v{T}, s[{S_X}:{S_X + 3}], s{S_T0} offen offset:{tn * 32}")
    g.setup_addrs()
    g.prologue_dma()
    g.zero_acc()
    g.mainloop()
    a(f"s_mul_i32 s{S_T0}, s{S_M0}, 9216")
    a(f"s_lshl_b32 s{S_T1}, s{S_N0}, 1")
    a(f"s_add_u32 s{S_T0}, s{S_T0}, s{S_T1}")
    a(f"s_lshl_b32 s{S_T1}, s{S_WM}, 5")
    a(f"v_and_b32 v{T}, 15, v{L}")
    a(f"v_add_u32 v{T}, s{S_T1}, v{T}")
    a(f"v_mul_u32_u24 v{T}, 9216, v{T}")
    a(f"v_lshrrev_b32 v{T + 1}, 4, v{L}")
    a(f"v_lshl_add_u32 v{T}, v{T + 1}, 3, v{T}")
    a(f"v_add_u32 v{T + 1}, {16 * 9216}, v{T}")
    bf = g.fw[0][0]
    k = 0
    for tn in range(g.TN):
        b = bias[tn]
        a(f"v_lshlrev_b32 v{bf}, 16, v{b}")
        a(f"v_and_b32 v{bf + 1}, 0xffff0000, v{b}")
        a(f"v_lshlrev_b32 v{bf + 2}, 16, v{b + 1}")
        a(f"v_and_b32 v{bf + 3}, 0xffff0000, v{b + 1}")
        for tm in range(g.TM):
            c = g.acc[tn][tm]
            p = T + 2 + 2 * (k & 1)
            k += 1
            for q in range(4):
                a(f"v_add_f32 v{c + q}, v{c + q}, v{bf + q}")
            for q in range(4):
                a(f"v_max_f32 v{c + q}, 0, v{c + q}")
            for q in range(4):
                a(f"v_mul_f32 v{c + q}, v{c + q}, v{c + q}")
            a(f"v_cvt_pk_bf16_f32 v{p}, v{c}, v{c + 1}")
            a(f"v_cvt_pk_bf16_f32 v{p + 1}, v{c + 2}, v{c + 3}")
            a(f"buffer_store_dwordx2 {vr(p, 2)}, v{T + tm}, s[{S_O}:{S_O + 3}], s{S_T0} offen offset:{tn * 32}")
    stamp(a, 4)
    stamp_dump(a, 5, 4, T, S_WAVE)
    a.label(end)
    a("s_endpgm")
    a.end_kernel(name, va.hi)
    return (name, 256, 512, g.LDS)


def gen_reduce(a, name, part_off, first):
    a.begin_kernel(name)
    end = f"L_{name}_end"
    common_head(a, 512, end)
    a(f"s_load_dwordx2 s[{S_P0 + 2}:{S_P0 + 3}], s[0:1], {KARG['ws']}")
    if first:
        a(f"s_load_dwordx2 s[{S_P0}:{S_P0 + 1}], s[0:1], {KARG['x']}")
    else:
        a(f"s_load_dwordx4 s[{S_P0 + 4}:{S_P0 + 7}], s[0:1], {KARG['b2']}")
    vL, vT = 1, 2
    a(f"v_lshrrev_b32 v{vT}, 6, v0")
    a(f"v_and_b32 v{vL}, 63, v0")
    a("s_nop 0")
    a(f"v_readfirstlane_b32 s{S_WAVE}, v{vT}")
    a("s_nop 3")
    a(f"s_lshl_b32 s{S_T0}, s2, 2")
    a(f"s_add_u32 s{S_T0}, s{S_T0}, s{S_WAVE}")
    a(f"s_mul_i32 s{S_T1}, s{S_T0}, 2304")
    a(f"s_mul_i32 s{S_T2}, s{S_T0}, 1152")
    a("s_waitcnt lgkmcnt(0)")
    srd_from(a, S_A, S_P0 + 2, part_off, 4 * 2048 * 2304)
    if first:
        srd_from(a, S_X, S_P0, 0, 2048 * 1152)
        srd_from(a, S_O, S_P0 + 2, WS_H, 2048 * 1152)
        srd_from(a, S_Y, S_P0 + 2, WS_HN, 2048 * 1152)
    else:
        srd_from(a, S_X, S_P0 + 2, WS_H, 2048 * 1152)
        srd_from(a, S_O, S_P0 + 6, 0, 2048 * 1152)
        srd_from(a, S_Y, S_P0 + 4, 0, 1152)
    vo4, vo2 = 4, 5
    a(f"v_mul_u32_u24 v{vo4}, 48, v{vL}")
    a(f"v_mul_u32_u24 v{vo2}, 24, v{vL}")
    P = 8
    X = 56
    B = 62
    V = 68
    TM = 80
    mask = (1 << 48) - 1
    set_exec(a, mask)
    for s in range(4):
        if s:
            a(f"s_add_u32 s{S_T1}, s{S_T1}, {2048 * 2304}")
        for j in range(3):
            a(f"buffer_load_dwordx4 {vr(P + s * 12 + j * 4, 4)}, v{vo4}, s[{S_A}:{S_A + 3}], s{S_T1} offen offset:{j * 16}")
    for j in range(3):
        a(f"buffer_load_dwordx2 {vr(X + 2 * j, 2)}, v{vo2}, s[{S_X}:{S_X + 3}], s{S_T2} offen offset:{j * 8}")
    if not first:
        for j in range(3):
            a(f"buffer_load_dwordx2 {vr(B + 2 * j, 2)}, v{vo2}, s[{S_Y}:{S_Y + 3}], 0 offen offset:{j * 8}")
    a("s_waitcnt vmcnt(0)")
    for i in range(12):
        a(f"v_add_f32 v{P + i}, v{P + i}, v{P + 12 + i}")
        a(f"v_add_f32 v{P + 24 + i}, v{P + 24 + i}, v{P + 36 + i}")
    for i in range(12):
        a(f"v_add_f32 v{P + i}, v{P + i}, v{P + 24 + i}")
    for i in range(6):
        s0, s1 = P + 2 * i, P + 2 * i + 1
        a(f"v_cvt_pk_bf16_f32 v{TM}, v{s0}, v{s1}")
        a(f"v_lshlrev_b32 v{s0}, 16, v{TM}")
        a(f"v_and_b32 v{s1}, 0xffff0000, v{TM}")
        if not first:
            a(f"v_lshlrev_b32 v{TM}, 16, v{B + i}")
            a(f"v_and_b32 v{TM + 1}, 0xffff0000, v{B + i}")
            a(f"v_add_f32 v{s0}, v{s0}, v{TM}")
            a(f"v_add_f32 v{s1}, v{s1}, v{TM + 1}")
            a(f"v_cvt_pk_bf16_f32 v{TM}, v{s0}, v{s1}")
            a(f"v_lshlrev_b32 v{s0}, 16, v{TM}")
            a(f"v_and_b32 v{s1}, 0xffff0000, v{TM}")
        a(f"v_lshlrev_b32 v{TM}, 16, v{X + i}")
        a(f"v_and_b32 v{TM + 1}, 0xffff0000, v{X + i}")
        a(f"v_add_f32 v{s0}, v{s0}, v{TM}")
        a(f"v_add_f32 v{s1}, v{s1}, v{TM + 1}")
        a(f"v_cvt_pk_bf16_f32 v{X + i}, v{s0}, v{s1}")
        if first:
            a(f"v_lshlrev_b32 v{V + 2 * i}, 16, v{X + i}")
            a(f"v_and_b32 v{V + 2 * i + 1}, 0xffff0000, v{X + i}")
    for j in range(3):
        a(f"buffer_store_dwordx2 {vr(X + 2 * j, 2)}, v{vo2}, s[{S_O}:{S_O + 3}], s{S_T2} offen offset:{j * 8}")
    a("s_mov_b64 exec, -1")
    if first:
        emit_ln(a, [V + i for i in range(12)], mask, TM, [B + i for i in range(6)])
        set_exec(a, mask)
        for j in range(3):
            a(f"buffer_store_dwordx2 {vr(B + 2 * j, 2)}, v{vo2}, s[{S_Y}:{S_Y + 3}], s{S_T2} offen offset:{j * 8}")
    a.label(end)
    a("s_endpgm")
    a.end_kernel(name, 88)
    return (name, 512, 256, 0)
```

```python
from asmlib import *
from layout import *
from gemm import (S_A, S_W, S_O, S_X, S_Y, S_WAVE, S_WM, S_WN, S_GK, S_M0, S_N0, S_SPLIT, S_OFFA, S_OFFW, S_MA, S_MW,
                  S_T0, S_T1, S_T2, S_T3, S_P0, emit_ln, common_head)

WST = 64 * 288
import os
NOMFMA = os.environ.get('NOMFMA') == '1'
NOW = os.environ.get('NOW') == '1'
NOA = os.environ.get('NOA') == '1'


class VM:
    def __init__(self):
        self.ops = []

    def add(self, tag):
        self.ops.append(tag)

    def need(self, tags):
        last = max((i for i, t in enumerate(self.ops) if t in tags), default=-1)
        return len(self.ops) - 1 - last


class Gemm2:
    def __init__(self, a, tag, BM, GK, KLEN, mstride, ldw, NS, PA, w_perm):
        self.a, self.tag = a, tag
        self.BM, self.GK = BM, GK
        self.GM = 8 // GK
        assert BM == self.GM * 32
        self.KSW = 2 // GK
        self.NST = KLEN // 64
        self.NK = self.NST * self.KSW
        self.mstride, self.ldw, self.NS, self.PA, self.w_perm = mstride, ldw, NS, PA, w_perm
        self.TM, self.TN = 2, 9
        self.LDS = NS * WST
        self.vm = VM()

    def alloc(self, va):
        self.vL = va.get()
        self.vT = va.get(10)
        self.vA = [va.get() for _ in range(2)]
        self.vW_off = [va.get() for _ in range(3)]
        self.nb = (self.LDS + 65535) // 65536
        self.vW_rd = [va.get() for _ in range(self.nb)]
        self.fa = [[va.get(4, 4) for _ in range(2)] for _ in range(self.PA + 1)]
        self.fw = [[va.get(4, 4) for _ in range(9)] for _ in range(2)]
        self.acc = [[va.get(4, 4) for _ in range(2)] for _ in range(9)]

    def wave_ids(self):
        a = self.a
        a(f"v_lshrrev_b32 v{self.vT}, 6, v0")
        a(f"v_and_b32 v{self.vL}, 63, v0")
        a("s_nop 0")
        a(f"v_readfirstlane_b32 s{S_WAVE}, v{self.vT}")
        a("s_nop 3")
        gm = self.GM.bit_length() - 1
        a(f"s_and_b32 s{S_WM}, s{S_WAVE}, {self.GM - 1}")
        a(f"s_lshr_b32 s{S_GK}, s{S_WAVE}, {gm}")

    def setup_dma(self):
        a = self.a
        L, T = self.vL, self.vT
        a(f"s_lshr_b32 s{S_T0}, s{S_M0}, 4")
        a(f"s_lshl_b32 s{S_T1}, s{S_WM}, 1")
        a(f"s_add_u32 s{S_T0}, s{S_T0}, s{S_T1}")
        a(f"s_mul_i32 s{S_T0}, s{S_T0}, {self.mstride}")
        a(f"s_add_u32 s{S_OFFA}, s{S_OFFA}, s{S_T0}")
        if self.GK == 2:
            a(f"s_lshl_b32 s{S_T0}, s{S_GK}, 10")
            a(f"s_add_u32 s{S_OFFA}, s{S_OFFA}, s{S_T0}")
        a(f"v_lshlrev_b32 v{self.vA[0]}, 4, v{L}")
        a(f"v_add_u32 v{self.vA[1]}, 0x{self.mstride:x}, v{self.vA[0]}")
        a(f"s_lshl_b32 s{S_T2}, s{S_N0}, 1")
        a(f"s_mov_b32 s{S_T1}, {self.ldw}")
        a(f"s_lshl_b32 s{S_T0}, s{S_WAVE}, 3")
        for i in range(3):
            a(f"v_add_u32 v{T}, {64 * i}, v{L}")
            a(f"v_mul_u32_u24 v{T + 1}, 57, v{T}")
            a(f"v_lshrrev_b32 v{T + 1}, 10, v{T + 1}")
            a(f"v_mul_u32_u24 v{T + 2}, 18, v{T + 1}")
            a(f"v_sub_u32 v{T + 2}, v{T}, v{T + 2}")
            a(f"v_add_u32 v{T + 1}, s{S_T0}, v{T + 1}")
            if self.w_perm:
                a(f"v_bfe_u32 v{T + 3}, v{T + 1}, 2, 1")
                a(f"v_bfe_u32 v{T + 4}, v{T + 1}, 3, 1")
                a(f"v_and_b32 v{T + 1}, 0xfffffff3, v{T + 1}")
                a(f"v_lshl_or_b32 v{T + 1}, v{T + 3}, 3, v{T + 1}")
                a(f"v_lshl_or_b32 v{T + 1}, v{T + 4}, 2, v{T + 1}")
            a(f"v_mul_lo_u32 v{T + 1}, v{T + 1}, s{S_T1}")
            a(f"v_lshl_add_u32 v{T + 1}, v{T + 2}, 4, v{T + 1}")
            a(f"v_add_u32 v{self.vW_off[i]}, s{S_T2}, v{T + 1}")
        a(f"s_mul_i32 s{S_MW}, s{S_WAVE}, {144 * 16}")

    def setup_rd(self):
        a = self.a
        L, T = self.vL, self.vT
        w0 = self.vW_rd[0]
        a(f"v_lshrrev_b32 v{T}, 4, v{L}")
        a(f"v_bfe_u32 v{T + 1}, v{L}, 2, 2")
        a(f"v_and_b32 v{T + 2}, 3, v{L}")
        a(f"v_lshrrev_b32 v{T + 3}, 1, v{T}")
        a(f"v_lshl_add_u32 v{T + 1}, v{T + 3}, 4, v{T + 1}")
        a(f"v_and_b32 v{T + 3}, 1, v{T}")
        a(f"v_lshl_add_u32 v{T + 1}, v{T + 3}, 2, v{T + 1}")
        a(f"v_mul_u32_u24 v{T + 1}, 288, v{T + 1}")
        a(f"v_lshl_add_u32 v{w0}, v{T + 2}, 3, v{T + 1}")
        if self.GK == 2:
            a(f"s_mul_i32 s{S_T1}, s{S_GK}, {32 * 288}")
            a(f"v_add_u32 v{w0}, s{S_T1}, v{w0}")
        for k in range(1, self.nb):
            a(f"v_add_u32 v{self.vW_rd[k]}, 0x{65536 * k:x}, v{w0}")
        for row in self.acc:
            for r in row:
                for j in range(4):
                    a(f"v_mov_b32 v{r + j}, 0")

    def w_dma(self, s):
        wb = (s % self.NS) * WST
        it = []
        for i in range(3):
            g = [f"s_add_u32 m0, s{S_MW}, 0x{wb + i * 1024:x}"]
            if i == 2:
                g += ["s_mov_b64 exec, 0xffff",
                      f"buffer_load_dwordx4 v{self.vW_off[i]}, s[{S_W}:{S_W + 3}], s{S_OFFW} offen lds",
                      "s_mov_b64 exec, -1", f"s_add_u32 s{S_OFFW}, s{S_OFFW}, 0x{64 * self.ldw:x}"]
            else:
                g += ["s_nop 0", f"buffer_load_dwordx4 v{self.vW_off[i]}, s[{S_W}:{S_W + 3}], s{S_OFFW} offen lds"]
            if NOW:
                g = [x for x in g if not x.startswith("buffer_load")] + ["s_nop 0"]
            it.append((g, ("W", s)))
        return it

    def a_load(self, g):
        f = self.fa[g % (self.PA + 1)]
        step = 1024 * self.GK
        if NOA:
            return [(["s_nop 0"], ("A", g)), (["s_nop 0"], ("A", g))]
        return [([f"buffer_load_dwordx4 {vr(f[0], 4)}, v{self.vA[0]}, s[{S_A}:{S_A + 3}], s{S_OFFA} offen"], ("A", g)),
                ([f"buffer_load_dwordx4 {vr(f[1], 4)}, v{self.vA[1]}, s[{S_A}:{S_A + 3}], s{S_OFFA} offen",
                  f"s_add_u32 s{S_OFFA}, s{S_OFFA}, {step}"], ("A", g))]

    def emit_vm(self, items):
        for g, tag in items:
            self.a.many(g)
            self.vm.add(tag)

    def prologue(self):
        g = 0
        for s in range(self.NS):
            for _ in range(self.KSW):
                if g < self.PA:
                    self.emit_vm(self.a_load(g))
                    g += 1
            self.emit_vm(self.w_dma(s))
        while g < self.PA:
            self.emit_vm(self.a_load(g))
            g += 1

    def frag_reads(self, g, fb):
        s, ks = g // self.KSW, g % self.KSW
        base = (s % self.NS) * WST + (ks * 32 * 288 if self.GK == 1 else 0)
        out = []
        for tn in range(9):
            for h in range(2):
                o = base + tn * 32 + h * 8 * 288
                out.append(f"ds_read_b64_tr_b16 {vr(self.fw[fb][tn] + 2 * h, 2)}, v{self.vW_rd[o >> 16]} offset:{o & 0xffff}")
        return out

    def mainloop(self):
        a = self.a
        stamp(a, 1)
        a(f"s_waitcnt vmcnt({self.vm.need({('W', 0)})})")
        a("s_barrier")
        stamp(a, 2)
        a.many(self.frag_reads(0, 0))
        for g in range(self.NK):
            s, ks = g // self.KSW, g % self.KSW
            last = ks == self.KSW - 1
            par = g & 1
            need = {("A", g)}
            if last and s + 1 < self.NST:
                need.add(("W", s + 1))
            a(f"s_waitcnt vmcnt({self.vm.need(need)}) lgkmcnt(0)")
            if last and s + 1 < self.NST:
                a("s_barrier")
            vmi = []
            if g + self.PA < self.NK:
                vmi += self.a_load(g + self.PA)
            if last and s + self.NS < self.NST:
                vmi += self.w_dma(s + self.NS)
            reads = self.frag_reads(g + 1, par ^ 1) if g + 1 < self.NK else []
            fill = []
            step = max(1, len(reads) // max(1, len(vmi)))
            vi = 0
            for i, r in enumerate(reads):
                fill.append(r)
                if i % step == step - 1 and vi < len(vmi):
                    fill.append(vmi[vi][0]); self.vm.add(vmi[vi][1]); vi += 1
            for k in range(vi, len(vmi)):
                fill.append(vmi[k][0]); self.vm.add(vmi[k][1])
            f = self.fa[g % (self.PA + 1)]
            mf = []
            for tn in range(9):
                for tm in range(2):
                    c = vr(self.acc[tn][tm], 4)
                    mf.append(f"v_mfma_f32_16x16x32_bf16 {c}, {vr(self.fw[par][tn], 4)}, {vr(f[tm], 4)}, {c}")
            if NOMFMA:
                mf = ["s_nop 0"] * len(mf)
            interleave(a, mf, fill)
        a("s_nop 15")
        stamp(a, 3)


def gen_splitk2(a, name, act_off, mstride, wkey, klen, w_perm, out_off, kidx):
    a.begin_kernel(name)
    end = f"L_{name}_end"
    common_head(a, 256, end)
    g = Gemm2(a, name[:4], 128, 2, klen, mstride, 1152, 6, 6, w_perm)
    va = VAlloc(1)
    g.alloc(va)
    a(f"s_load_dwordx2 s[{S_P0}:{S_P0 + 1}], s[0:1], {KARG[wkey]}")
    a(f"s_load_dwordx2 s[{S_P0 + 2}:{S_P0 + 3}], s[0:1], {KARG['ws']}")
    g.wave_ids()
    a(f"s_and_b32 s{S_SPLIT}, s2, 3")
    a(f"s_bfe_u32 s{S_T0}, s2, 0x10002")
    a(f"s_lshr_b32 s{S_T1}, s2, 3")
    a(f"s_and_b32 s{S_T2}, s{S_T1}, 3")
    a(f"s_mul_i32 s{S_N0}, s{S_T2}, 144")
    a(f"s_lshr_b32 s{S_T1}, s{S_T1}, 2")
    a(f"s_lshl_b32 s{S_T0}, s{S_T0}, 3")
    a(f"s_add_u32 s{S_T1}, s{S_T1}, s{S_T0}")
    a(f"s_lshl_b32 s{S_M0}, s{S_T1}, 7")
    a(f"s_mul_i32 s{S_OFFA}, s{S_SPLIT}, {klen // 32 * 1024}")
    a(f"s_mul_i32 s{S_OFFW}, s{S_SPLIT}, {klen * 1152}")
    a("s_waitcnt lgkmcnt(0)")
    srd_from(a, S_A, S_P0 + 2, act_off, 128 * mstride)
    srd_from(a, S_W, S_P0, 0, klen * 4 * 1152)
    srd_from(a, S_O, S_P0 + 2, out_off, 4 * 2048 * 2304)
    g.setup_dma()
    g.prologue()
    g.setup_rd()
    g.mainloop()
    T, L = g.vT, g.vL
    PITCH, REG = 592, 128 * 592
    a("s_barrier")
    a(f"s_lshl_b32 s{S_T0}, s{S_WM}, 5")
    a(f"v_and_b32 v{T}, 15, v{L}")
    a(f"v_add_u32 v{T}, s{S_T0}, v{T}")
    a(f"v_mul_u32_u24 v{T}, {PITCH}, v{T}")
    a(f"v_lshrrev_b32 v{T + 1}, 4, v{L}")
    a(f"v_lshl_add_u32 v{T}, v{T + 1}, 4, v{T}")
    a(f"s_mul_i32 s{S_T0}, s{S_GK}, {REG}")
    a(f"v_add_u32 v{T}, s{S_T0}, v{T}")
    for tn in range(9):
        for tm in range(2):
            a(f"ds_write_b128 v{T}, {vr(g.acc[tn][tm], 4)} offset:{tm * 16 * PITCH + tn * 64}")
    a(f"s_mul_i32 s{S_T0}, s{S_SPLIT}, {2048 * 2304}")
    a(f"s_lshl_b32 s{S_T2}, s{S_WAVE}, 4")
    a(f"s_add_u32 s{S_T1}, s{S_M0}, s{S_T2}")
    a(f"s_mul_i32 s{S_T1}, s{S_T1}, 2304")
    a(f"s_add_u32 s{S_T0}, s{S_T0}, s{S_T1}")
    a(f"s_lshl_b32 s{S_T1}, s{S_N0}, 2")
    a(f"s_add_u32 s{S_T0}, s{S_T0}, s{S_T1}")
    a(f"s_mul_i32 s{S_T2}, s{S_T2}, {PITCH}")
    la = [g.fa[i][0] for i in range(7)] + [g.fa[0][1], g.fa[1][1]]
    for i in range(9):
        r = la[i]
        a(f"v_add_u32 v{T + 1}, {64 * i}, v{L}")
        a(f"v_mul_u32_u24 v{T + 2}, 1821, v{T + 1}")
        a(f"v_lshrrev_b32 v{T + 2}, 16, v{T + 2}")
        a(f"v_mul_u32_u24 v{T + 3}, 36, v{T + 2}")
        a(f"v_sub_u32 v{T + 3}, v{T + 1}, v{T + 3}")
        a(f"v_lshlrev_b32 v{T + 3}, 4, v{T + 3}")
        a(f"v_mul_u32_u24 v{r}, {PITCH}, v{T + 2}")
        a(f"v_add3_u32 v{r}, v{r}, v{T + 3}, s{S_T2}")
        a(f"v_add_u32 v{r + 2}, 0x{REG:x}, v{r}")
        a(f"v_mul_u32_u24 v{r + 1}, 2304, v{T + 2}")
        a(f"v_add_u32 v{r + 1}, v{r + 1}, v{T + 3}")
    a("s_waitcnt lgkmcnt(0)")
    a("s_barrier")
    for i in range(9):
        a(f"ds_read_b128 {vr(g.acc[i][0], 4)}, v{la[i]}")
        a(f"ds_read_b128 {vr(g.acc[i][1], 4)}, v{la[i] + 2}")
    for i in range(9):
        a(f"s_waitcnt lgkmcnt({min(14, 16 - 2 * i)})")
        c, d = g.acc[i][0], g.acc[i][1]
        for q in range(4):
            a(f"v_add_f32 v{c + q}, v{c + q}, v{d + q}")
        a(f"buffer_store_dwordx4 {vr(c, 4)}, v{la[i] + 1}, s[{S_O}:{S_O + 3}], s{S_T0} offen")
    stamp(a, 4)
    stamp_dump(a, 5, kidx, T, S_WAVE)
    a.label(end)
    a("s_endpgm")
    a.end_kernel(name, va.hi)
    return (name, 256, 512, max(g.LDS, 2 * REG))


def gen_up2(a):
    name = "mlp_up_kernel"
    a.begin_kernel(name)
    end = f"L_{name}_end"
    common_head(a, 256, end)
    g = Gemm2(a, "up", 256, 1, 576, 18432, 9216, 5, 6, True)
    va = VAlloc(1)
    g.alloc(va)
    bias = [va.get(2, 2) for _ in range(9)]
    a(f"s_load_dwordx4 s[{S_P0 + 4}:{S_P0 + 7}], s[0:1], {KARG['w1']}")
    a(f"s_load_dwordx2 s[{S_P0 + 2}:{S_P0 + 3}], s[0:1], {KARG['ws']}")
    g.wave_ids()
    a(f"s_and_b32 s{S_T0}, s2, 7")
    a(f"s_lshr_b32 s{S_T1}, s2, 3")
    a(f"s_and_b32 s{S_T2}, s{S_T1}, 3")
    a(f"s_lshl_b32 s{S_T0}, s{S_T0}, 2")
    a(f"s_add_u32 s{S_SPLIT}, s{S_T0}, s{S_T2}")
    a(f"s_lshr_b32 s{S_T1}, s{S_T1}, 2")
    a(f"s_lshl_b32 s{S_M0}, s{S_T1}, 8")
    a(f"s_mul_i32 s{S_N0}, s{S_SPLIT}, 144")
    a(f"s_mov_b32 s{S_OFFA}, 0")
    a(f"s_mov_b32 s{S_OFFW}, 0")
    a("s_waitcnt lgkmcnt(0)")
    srd_from(a, S_A, S_P0 + 2, WS_HN, 2048 * 1152)
    srd_from(a, S_W, S_P0 + 4, 0, 576 * 9216)
    srd_from(a, S_O, S_P0 + 2, WS_ACT, 2048 * 9216)
    srd_from(a, S_X, S_P0 + 6, 0, 9216)
    T, L = g.vT, g.vL
    g.setup_dma()
    g.prologue()
    a(f"v_lshrrev_b32 v{T}, 4, v{L}")
    a(f"v_lshlrev_b32 v{T}, 3, v{T}")
    a(f"s_lshl_b32 s{S_T0}, s{S_N0}, 1")
    for tn in range(9):
        a(f"buffer_load_dwordx2 {vr(bias[tn], 2)}, v{T}, s[{S_X}:{S_X + 3}], s{S_T0} offen offset:{tn * 32}")
        g.vm.add(("B", tn))
    g.setup_rd()
    g.mainloop()
    PITCH = 304
    a("s_waitcnt vmcnt(0)")
    a("s_barrier")
    a(f"s_mul_i32 s{S_T2}, s{S_WAVE}, {32 * PITCH}")
    a(f"v_and_b32 v{T}, 15, v{L}")
    a(f"v_mul_u32_u24 v{T}, {PITCH}, v{T}")
    a(f"v_lshrrev_b32 v{T + 1}, 4, v{L}")
    a(f"v_lshl_add_u32 v{T + 2}, v{T + 1}, 3, v{T}")
    a(f"v_add_u32 v{T + 2}, s{S_T2}, v{T + 2}")
    bf = g.fw[0][0]
    k = 0
    for tn in range(9):
        b = bias[tn]
        a(f"v_lshlrev_b32 v{bf}, 16, v{b}")
        a(f"v_and_b32 v{bf + 1}, 0xffff0000, v{b}")
        a(f"v_lshlrev_b32 v{bf + 2}, 16, v{b + 1}")
        a(f"v_and_b32 v{bf + 3}, 0xffff0000, v{b + 1}")
        for tm in range(2):
            c = g.acc[tn][tm]
            for q in range(4):
                a(f"v_add_f32 v{c + q}, v{c + q}, v{bf + q}")
            for q in range(4):
                a(f"v_max_f32 v{c + q}, 0, v{c + q}")
            for q in range(4):
                a(f"v_mul_f32 v{c + q}, v{c + q}, v{c + q}")
            a(f"v_cvt_pk_bf16_f32 v{c}, v{c}, v{c + 1}")
            a(f"v_cvt_pk_bf16_f32 v{c + 1}, v{c + 2}, v{c + 3}")
            a(f"ds_write_b64 v{T + 2}, {vr(c, 2)} offset:{tm * 16 * PITCH + tn * 32}")
    a(f"s_lshr_b32 s{S_T0}, s{S_M0}, 4")
    a(f"s_lshl_b32 s{S_T1}, s{S_WM}, 1")
    a(f"s_add_u32 s{S_T0}, s{S_T0}, s{S_T1}")
    a(f"s_mul_i32 s{S_T0}, s{S_T0}, 147456")
    a(f"s_mul_i32 s{S_T1}, s{S_SPLIT}, 18")
    a(f"v_and_b32 v{T + 3}, 15, v{L}")
    a(f"v_lshlrev_b32 v{T + 3}, 4, v{T + 3}")
    a(f"v_add_u32 v{T}, s{S_T2}, v{T}")
    la = [g.fa[i][0] for i in range(7)] + [g.fa[0][1], g.fa[1][1]]
    a(f"s_mov_b32 s{S_T3}, 147456")
    for i in range(9):
        r = la[i]
        a(f"v_add_u32 v{T + 4}, {4 * i}, v{T + 1}")
        a(f"v_mul_u32_u24 v{T + 5}, 57, v{T + 4}")
        a(f"v_lshrrev_b32 v{T + 5}, 10, v{T + 5}")
        a(f"v_mul_u32_u24 v{T + 6}, 18, v{T + 5}")
        a(f"v_sub_u32 v{T + 6}, v{T + 4}, v{T + 6}")
        a(f"v_mul_u32_u24 v{r}, {16 * PITCH}, v{T + 5}")
        a(f"v_lshl_add_u32 v{r}, v{T + 6}, 4, v{r}")
        a(f"v_add_u32 v{r}, v{r}, v{T}")
        a(f"v_add_u32 v{T + 6}, s{S_T1}, v{T + 6}")
        a(f"v_lshrrev_b32 v{T + 7}, 2, v{T + 6}")
        a(f"v_lshl_add_u32 v{T + 7}, v{T + 7}, 10, v{T + 3}")
        a(f"v_and_b32 v{T + 6}, 3, v{T + 6}")
        a(f"v_lshl_add_u32 v{T + 7}, v{T + 6}, 8, v{T + 7}")
        a(f"v_mul_lo_u32 v{T + 5}, v{T + 5}, s{S_T3}")
        a(f"v_add_u32 v{r + 1}, v{T + 7}, v{T + 5}")
    a("s_waitcnt lgkmcnt(0)")
    for i in range(9):
        a(f"ds_read_b128 {vr(g.acc[i][0], 4)}, v{la[i]}")
    for i in range(9):
        a(f"s_waitcnt lgkmcnt({8 - i})")
        a(f"buffer_store_dwordx4 {vr(g.acc[i][0], 4)}, v{la[i] + 1}, s[{S_O}:{S_O + 3}], s{S_T0} offen")
    stamp(a, 4)
    stamp_dump(a, 5, 4, T, S_WAVE)
    a.label(end)
    a("s_endpgm")
    a.end_kernel(name, va.hi)
    return (name, 256, 512, g.LDS)


def gen_reduce2(a, name, part_off, first):
    a.begin_kernel(name)
    end = f"L_{name}_end"
    common_head(a, 512, end)
    a(f"s_load_dwordx2 s[{S_P0 + 2}:{S_P0 + 3}], s[0:1], {KARG['ws']}")
    if first:
        a(f"s_load_dwordx2 s[{S_P0}:{S_P0 + 1}], s[0:1], {KARG['x']}")
    else:
        a(f"s_load_dwordx4 s[{S_P0 + 4}:{S_P0 + 7}], s[0:1], {KARG['b2']}")
    vL, vT = 1, 2
    a(f"v_lshrrev_b32 v{vT}, 6, v0")
    a(f"v_and_b32 v{vL}, 63, v0")
    a("s_nop 0")
    a(f"v_readfirstlane_b32 s{S_WAVE}, v{vT}")
    a("s_nop 3")
    a(f"s_lshl_b32 s{S_T0}, s2, 2")
    a(f"s_add_u32 s{S_T0}, s{S_T0}, s{S_WAVE}")
    a(f"s_mul_i32 s{S_T1}, s{S_T0}, 2304")
    a(f"s_mul_i32 s{S_T2}, s{S_T0}, 1152")
    a(f"s_lshr_b32 s38, s{S_T0}, 4")
    a(f"s_mul_i32 s38, s38, 18432")
    a(f"s_and_b32 s39, s{S_T0}, 15")
    a(f"s_lshl_b32 s39, s39, 4")
    a(f"s_add_u32 s38, s38, s39")
    a("s_waitcnt lgkmcnt(0)")
    srd_from(a, S_A, S_P0 + 2, part_off, 4 * 2048 * 2304)
    if first:
        srd_from(a, S_X, S_P0, 0, 2048 * 1152)
        srd_from(a, S_O, S_P0 + 2, WS_H, 2048 * 1152)
        srd_from(a, S_Y, S_P0 + 2, WS_HN, 2048 * 1152)
    else:
        srd_from(a, S_X, S_P0 + 2, WS_H, 2048 * 1152)
        srd_from(a, S_O, S_P0 + 6, 0, 2048 * 1152)
        srd_from(a, S_Y, S_P0 + 4, 0, 1152)
    vo4, vo2, vo3 = 4, 5, 6
    a(f"v_lshlrev_b32 v{vo4}, 6, v{vL}")
    a(f"v_lshlrev_b32 v{vo2}, 5, v{vL}")
    P = 8
    X = 72
    B = 80
    V = 88
    TM = 104
    mask = (1 << 36) - 1
    set_exec(a, mask)
    for s in range(4):
        if s:
            a(f"s_add_u32 s{S_T1}, s{S_T1}, {2048 * 2304}")
        for j in range(4):
            a(f"buffer_load_dwordx4 {vr(P + s * 16 + j * 4, 4)}, v{vo4}, s[{S_A}:{S_A + 3}], s{S_T1} offen offset:{j * 16}")
    for j in range(2):
        a(f"buffer_load_dwordx4 {vr(X + 4 * j, 4)}, v{vo2}, s[{S_X}:{S_X + 3}], s{S_T2} offen offset:{j * 16}")
    if not first:
        for j in range(2):
            a(f"buffer_load_dwordx4 {vr(B + 4 * j, 4)}, v{vo2}, s[{S_Y}:{S_Y + 3}], 0 offen offset:{j * 16}")
    a(f"v_lshrrev_b32 v{vo3}, 1, v{vL}")
    a(f"v_lshlrev_b32 v{vo3}, 10, v{vo3}")
    a(f"v_and_b32 v{TM}, 1, v{vL}")
    a(f"v_lshl_add_u32 v{vo3}, v{TM}, 9, v{vo3}")
    a("s_waitcnt vmcnt(0)")
    for i in range(16):
        a(f"v_add_f32 v{P + i}, v{P + i}, v{P + 16 + i}")
        a(f"v_add_f32 v{P + 32 + i}, v{P + 32 + i}, v{P + 48 + i}")
    for i in range(16):
        a(f"v_add_f32 v{P + i}, v{P + i}, v{P + 32 + i}")
    for i in range(8):
        s0, s1 = P + 2 * i, P + 2 * i + 1
        a(f"v_cvt_pk_bf16_f32 v{TM}, v{s0}, v{s1}")
        a(f"v_lshlrev_b32 v{s0}, 16, v{TM}")
        a(f"v_and_b32 v{s1}, 0xffff0000, v{TM}")
        if not first:
            a(f"v_lshlrev_b32 v{TM}, 16, v{B + i}")
            a(f"v_and_b32 v{TM + 1}, 0xffff0000, v{B + i}")
            a(f"v_add_f32 v{s0}, v{s0}, v{TM}")
            a(f"v_add_f32 v{s1}, v{s1}, v{TM + 1}")
            a(f"v_cvt_pk_bf16_f32 v{TM}, v{s0}, v{s1}")
            a(f"v_lshlrev_b32 v{s0}, 16, v{TM}")
            a(f"v_and_b32 v{s1}, 0xffff0000, v{TM}")
        a(f"v_lshlrev_b32 v{TM}, 16, v{X + i}")
        a(f"v_and_b32 v{TM + 1}, 0xffff0000, v{X + i}")
        a(f"v_add_f32 v{s0}, v{s0}, v{TM}")
        a(f"v_add_f32 v{s1}, v{s1}, v{TM + 1}")
        a(f"v_cvt_pk_bf16_f32 v{X + i}, v{s0}, v{s1}")
        if first:
            a(f"v_lshlrev_b32 v{V + 2 * i}, 16, v{X + i}")
            a(f"v_and_b32 v{V + 2 * i + 1}, 0xffff0000, v{X + i}")
    for j in range(2):
        a(f"buffer_store_dwordx4 {vr(X + 4 * j, 4)}, v{vo2}, s[{S_O}:{S_O + 3}], s{S_T2} offen offset:{j * 16}")
    a("s_mov_b64 exec, -1")
    if first:
        emit_ln(a, [V + i for i in range(16)], mask, TM, [B + i for i in range(8)])
        set_exec(a, mask)
        a(f"buffer_store_dwordx4 {vr(B, 4)}, v{vo3}, s[{S_Y}:{S_Y + 3}], s38 offen")
        a(f"buffer_store_dwordx4 {vr(B + 4, 4)}, v{vo3}, s[{S_Y}:{S_Y + 3}], s38 offen offset:256")
    a.label(end)
    a("s_endpgm")
    a.end_kernel(name, 112)
    return (name, 512, 256, 0)
```

```python
import sys
from asmlib import *
from layout import *
import gemm
import gemm2

NAME = "sequential_preLN__compressed_kv_cla__dense_activation_squared_relu__prompt"
HEAD = open(f"cdna_kernels/{NAME}.s.ref").read().split("; Override launch")[0]

def build(stages):
    a = Asm()
    launches = []
    if "kv" in stages: launches.append(gemm.gen_kv(a))
    if "attn" in stages:
        import attn
        launches.append(attn.gen_attn(a))
    if "oproj" in stages: launches.append(gemm2.gen_splitk2(a, "oproj_kernel", WS_CTX, 131072, "wo", 1024, False, WS_P1, 2))
    if "red1" in stages: launches.append(gemm2.gen_reduce2(a, "red1_kernel", WS_P1, True))
    if "up" in stages: launches.append(gemm2.gen_up2(a))
    if "down" in stages: launches.append(gemm2.gen_splitk2(a, "down_kernel", WS_ACT, 147456, "w2", 1152, True, WS_P2, 5))
    if "red2" in stages: launches.append(gemm2.gen_reduce2(a, "red2_kernel", WS_P2, False))
    out = [HEAD.rstrip()]
    for name, grid, block, lds in launches:
        out.append(f"; @launch kernel={name} grid=({grid},1,1) block=({block},1,1) lds={lds}")
    out.append('.amdgcn_target "amdgcn-amd-amdhsa--gfx950"')
    out.append(".text")
    out += a.L
    out += a.descriptors()
    return "\n".join(out) + "\n"

if __name__ == "__main__":
    stages = sys.argv[2].split(",") if len(sys.argv) > 2 else ["kv", "attn", "oproj", "red1", "up", "down", "red2"]
    dst = sys.argv[1] if len(sys.argv) > 1 else f"cdna_kernels/{NAME}.s"
    open(dst, "w").write(build(stages))
    print("wrote", dst)
```

```python
from asmlib import *
from layout import *

S_A, S_W, S_O, S_X, S_Y = 4, 8, 12, 16, 40
S_WAVE, S_WM, S_WN, S_GK, S_M0, S_N0, S_SPLIT = 20, 21, 22, 23, 24, 25, 26
S_OFFA, S_OFFW, S_MA, S_MW, S_CNT = 27, 28, 29, 30, 31
S_T0, S_T1, S_T2, S_T3 = 32, 33, 34, 35
S_KST = 54
S_P0 = 44
import os
PRO = int(os.environ.get("PRO", "4"))
ROT = int(os.environ.get("ROT", "0"))
NOMFMA = os.environ.get('NOMFMA') == '1'
NOW = os.environ.get('NOW') == '1'
NOA = os.environ.get('NOA') == '1'
NORD = os.environ.get('NORD') == '1'


def emit_ln(a, vals, mask, va_tmp, out_pk):
    acc, mean, t, u, rinv, d = [va_tmp + i for i in range(6)]
    a(f"v_mov_b32 v{acc}, 0")
    set_exec(a, mask)
    for v in vals:
        a(f"v_add_f32 v{acc}, v{acc}, v{v}")
    a("s_mov_b64 exec, -1")
    wave_reduce_add(a, acc, 36)
    a(f"s_mov_b32 s37, 0x{f32bits(1.0 / 576):x}")
    a(f"v_mov_b32 v{mean}, s36")
    a(f"v_mul_f32 v{mean}, s37, v{mean}")
    a(f"v_mov_b32 v{acc}, 0")
    set_exec(a, mask)
    for v in vals:
        a(f"v_sub_f32 v{d}, v{v}, v{mean}")
        a(f"v_fmac_f32 v{acc}, v{d}, v{d}")
    a("s_mov_b64 exec, -1")
    wave_reduce_add(a, acc, 36)
    a(f"v_mov_b32 v{t}, s36")
    a(f"v_mul_f32 v{t}, s37, v{t}")
    a(f"v_cvt_pk_bf16_f32 v{t}, v{t}, v{mean}")
    a(f"v_and_b32 v{mean}, 0xffff0000, v{t}")
    a(f"v_lshlrev_b32 v{t}, 16, v{t}")
    a(f"v_add_f32 v{t}, 0x{f32bits(1e-5):x}, v{t}")
    a(f"v_cvt_pk_bf16_f32 v{t}, v{t}, v{t}")
    a(f"v_lshlrev_b32 v{t}, 16, v{t}")
    a(f"v_sqrt_f32 v{t}, v{t}")
    a("s_nop 0")
    a(f"v_cvt_pk_bf16_f32 v{t}, v{t}, v{t}")
    a(f"v_lshlrev_b32 v{t}, 16, v{t}")
    a(f"v_rcp_f32 v{rinv}, v{t}")
    for i in range(0, len(vals), 2):
        a(f"v_sub_f32 v{d}, v{vals[i]}, v{mean}")
        a(f"v_sub_f32 v{u}, v{vals[i + 1]}, v{mean}")
        a(f"v_cvt_pk_bf16_f32 v{d}, v{d}, v{u}")
        a(f"v_and_b32 v{u}, 0xffff0000, v{d}")
        a(f"v_lshlrev_b32 v{d}, 16, v{d}")
        a(f"v_mul_f32 v{d}, v{d}, v{rinv}")
        a(f"v_mul_f32 v{u}, v{u}, v{rinv}")
        a(f"v_cvt_pk_bf16_f32 v{out_pk[i // 2]}, v{d}, v{u}")


class Gemm:
    def __init__(self, a, tag, BM, BN, BKS, NS, GM, GN, GK, KLEN, lda, ldw, epi, w_perm=True, swap=False):
        self.a = a
        self.tag = tag
        self.BM, self.BN, self.BKS, self.NS = BM, BN, BKS, NS
        self.GM, self.GN, self.GK = GM, GN, GK
        assert GM * GN * GK == 8
        self.TM = BM // GM // 16
        self.TN = BN // GN // 16
        self.KSW = BKS // 32 // GK
        self.NST = KLEN // BKS
        assert KLEN % BKS == 0
        self.lda, self.ldw = lda, ldw
        self.epi = epi
        self.w_perm = w_perm
        self.swap = swap
        self.RB = BKS * 2
        self.WB = BN * 2
        self.NA = BM * self.RB // 1024 // 8
        if self.WB == 288:
            assert BKS == 64
            self.NW = 3
            self.WBYTES = BKS * 288
        else:
            assert self.WB == 512 and BKS == 32
            self.NW = 2
            self.WBYTES = 16 * 1056
        self.ABYTES = BM * self.RB
        self.SS = self.ABYTES + self.WBYTES
        self.LDS = self.SS * NS
        assert self.LDS <= 163840
        self.D = self.NA + self.NW

    def alloc(self, va):
        self.vL = va.get()
        self.vT = va.get(8)
        self.vA_off = [va.get() for _ in range(self.NA)]
        self.vW_off = [va.get() for _ in range(self.NW)]
        nb = (self.LDS + 65535) // 65536
        self.nb = nb
        nka = self.KSW if self.RB == 128 else 1
        self.vA_rd = [[va.get() for _ in range(nb)] for _ in range(nka)]
        self.vW_rd = [va.get() for _ in range(nb)]
        self.fa = [[va.get(4, 4) for _ in range(self.TM)] for _ in range(2)]
        self.fw = [[va.get(4, 4) for _ in range(self.TN)] for _ in range(2)]
        self.acc = [[va.get(4, 4) for _ in range(self.TM)] for _ in range(self.TN)]

    def setup_addrs(self):
        a = self.a
        L, T = self.vL, self.vT
        RB = self.RB
        CPR = RB // 16
        RPI = 1024 // RB
        cs = {4: 2, 8: 3}[CPR]
        for ia in range(self.NA):
            a(f"s_mul_i32 s{S_T0}, s{S_WAVE}, {self.NA * RPI}")
            a(f"s_add_u32 s{S_T0}, s{S_T0}, {ia * RPI}")
            a(f"v_lshrrev_b32 v{T}, {cs}, v{L}")
            a(f"v_add_u32 v{T}, s{S_T0}, v{T}")
            if RB == 128:
                a(f"v_bfe_u32 v{T + 1}, v{T}, 1, 3")
            else:
                a(f"v_bfe_u32 v{T + 1}, v{T}, 3, 1")
                a(f"v_mul_u32_u24 v{T + 1}, 3, v{T + 1}")
            a(f"v_and_b32 v{T + 2}, {CPR - 1}, v{L}")
            a(f"v_xor_b32 v{T + 2}, v{T + 2}, v{T + 1}")
            a(f"v_lshlrev_b32 v{T + 2}, 4, v{T + 2}")
            a(f"v_add_u32 v{T}, s{S_M0}, v{T}")
            a(f"s_mov_b32 s{S_T1}, {self.lda}")
            a(f"v_mul_lo_u32 v{T}, v{T}, s{S_T1}")
            a(f"v_add_u32 v{self.vA_off[ia]}, v{T}, v{T + 2}")
        a(f"s_mul_i32 s{S_MA}, s{S_WAVE}, {self.NA * 1024}")
        a(f"s_lshl_b32 s{S_T2}, s{S_N0}, 1")
        a(f"s_mov_b32 s{S_T1}, {self.ldw}")
        if self.WB == 288:
            for i in range(3):
                a(f"v_add_u32 v{T}, {64 * i}, v{L}")
                a(f"v_mul_u32_u24 v{T + 1}, 57, v{T}")
                a(f"v_lshrrev_b32 v{T + 1}, 10, v{T + 1}")
                a(f"v_mul_u32_u24 v{T + 2}, 18, v{T + 1}")
                a(f"v_sub_u32 v{T + 2}, v{T}, v{T + 2}")
                a(f"s_lshl_b32 s{S_T0}, s{S_WAVE}, 3")
                a(f"v_add_u32 v{T + 1}, s{S_T0}, v{T + 1}")
                if self.w_perm:
                    a(f"v_bfe_u32 v{T + 3}, v{T + 1}, 2, 1")
                    a(f"v_bfe_u32 v{T + 4}, v{T + 1}, 3, 1")
                    a(f"v_and_b32 v{T + 1}, 0xfffffff3, v{T + 1}")
                    a(f"v_lshl_or_b32 v{T + 1}, v{T + 3}, 3, v{T + 1}")
                    a(f"v_lshl_or_b32 v{T + 1}, v{T + 4}, 2, v{T + 1}")
                a(f"v_mul_lo_u32 v{T + 1}, v{T + 1}, s{S_T1}")
                a(f"v_lshl_add_u32 v{T + 1}, v{T + 2}, 4, v{T + 1}")
                a(f"v_add_u32 v{self.vW_off[i]}, s{S_T2}, v{T + 1}")
            a(f"s_mul_i32 s{S_MW}, s{S_WAVE}, {144 * 16}")
        else:
            for i in range(2):
                a(f"s_lshl_b32 s{S_T0}, s{S_WAVE}, 1")
                a(f"s_add_u32 s{S_T0}, s{S_T0}, {i}")
                a(f"s_and_b32 s{S_T3}, s{S_T0}, 3")
                a(f"s_lshr_b32 s{S_T0}, s{S_T0}, 2")
                a(f"s_lshl_b32 s{S_T0}, s{S_T0}, 3")
                a(f"s_add_u32 s{S_T0}, s{S_T0}, s{S_T3}")
                a(f"v_lshrrev_b32 v{T}, 5, v{L}")
                a(f"v_lshlrev_b32 v{T}, 2, v{T}")
                a(f"v_add_u32 v{T}, s{S_T0}, v{T}")
                a(f"v_mul_lo_u32 v{T}, v{T}, s{S_T1}")
                a(f"v_and_b32 v{T + 1}, 31, v{L}")
                a(f"v_lshl_add_u32 v{T}, v{T + 1}, 4, v{T}")
                a(f"v_add_u32 v{self.vW_off[i]}, s{S_T2}, v{T}")
            a(f"s_mul_i32 s{S_MW}, s{S_WAVE}, {2 * 1056}")
        a(f"s_mul_i32 s{S_T0}, s{S_WM}, {self.TM * 16}")
        a(f"v_and_b32 v{T}, 15, v{L}")
        a(f"v_add_u32 v{T}, s{S_T0}, v{T}")
        a(f"v_lshrrev_b32 v{T + 1}, 4, v{L}")
        r0 = self.vA_rd[0][0]
        if RB == 128:
            if self.GK == 2:
                a(f"s_lshl_b32 s{S_T1}, s{S_GK}, 2")
                a(f"v_add_u32 v{T + 1}, s{S_T1}, v{T + 1}")
            a(f"v_bfe_u32 v{T + 2}, v{T}, 1, 3")
            a(f"v_xor_b32 v{T + 1}, v{T + 1}, v{T + 2}")
            a(f"v_lshlrev_b32 v{T + 1}, 4, v{T + 1}")
            a(f"v_lshl_add_u32 v{r0}, v{T}, 7, v{T + 1}")
            if len(self.vA_rd) == 2:
                a(f"v_xor_b32 v{self.vA_rd[1][0]}, 64, v{r0}")
        else:
            a(f"v_bfe_u32 v{T + 2}, v{T}, 3, 1")
            a(f"v_mul_u32_u24 v{T + 2}, 3, v{T + 2}")
            a(f"v_xor_b32 v{T + 1}, v{T + 1}, v{T + 2}")
            a(f"v_lshlrev_b32 v{T + 1}, 4, v{T + 1}")
            a(f"v_lshl_add_u32 v{r0}, v{T}, 6, v{T + 1}")
        for rs in self.vA_rd:
            for k in range(1, self.nb):
                a(f"v_add_u32 v{rs[k]}, 0x{65536 * k:x}, v{rs[0]}")
        w0 = self.vW_rd[0]
        a(f"v_lshrrev_b32 v{T}, 4, v{L}")
        a(f"v_bfe_u32 v{T + 1}, v{L}, 2, 2")
        a(f"v_and_b32 v{T + 2}, 3, v{L}")
        if self.WB == 288:
            a(f"v_lshrrev_b32 v{T + 3}, 1, v{T}")
            a(f"v_lshl_add_u32 v{T + 1}, v{T + 3}, 4, v{T + 1}")
            a(f"v_and_b32 v{T + 3}, 1, v{T}")
            a(f"v_lshl_add_u32 v{T + 1}, v{T + 3}, 2, v{T + 1}")
            a(f"v_mul_u32_u24 v{T + 1}, 288, v{T + 1}")
            a(f"v_lshl_add_u32 v{w0}, v{T + 2}, 3, v{T + 1}")
            if self.GK == 2:
                a(f"s_mul_i32 s{S_T1}, s{S_GK}, {32 * 288}")
                a(f"v_add_u32 v{w0}, s{S_T1}, v{w0}")
        else:
            a(f"v_lshl_add_u32 v{T + 1}, v{T}, 2, v{T + 1}")
            a(f"v_mul_u32_u24 v{T + 1}, 1056, v{T + 1}")
            a(f"v_lshl_add_u32 v{w0}, v{T + 2}, 3, v{T + 1}")
        a(f"s_mul_i32 s{S_T1}, s{S_WN}, {self.TN * 32}")
        a(f"v_add_u32 v{w0}, s{S_T1}, v{w0}")
        for k in range(1, self.nb):
            a(f"v_add_u32 v{self.vW_rd[k]}, 0x{65536 * k:x}, v{w0}")

    def rotate(self, cm, cn):
        a = self.a
        cm, cn = cm * ROT, cn * ROT
        a(f"s_lshr_b32 s{S_T0}, s2, 3")
        a(f"s_and_b32 s{S_T1}, s{S_T0}, 3")
        a(f"s_lshr_b32 s{S_T0}, s{S_T0}, 2")
        a(f"s_mul_i32 s{S_T0}, s{S_T0}, {cm}")
        a(f"s_mul_i32 s{S_T1}, s{S_T1}, {cn}")
        a(f"s_add_u32 s{S_KST}, s{S_T0}, s{S_T1}")
        a(f"s_cmp_ge_u32 s{S_KST}, {self.NST}")
        a(f"s_cselect_b32 s{S_T0}, {self.NST}, 0")
        a(f"s_sub_u32 s{S_KST}, s{S_KST}, s{S_T0}")
        a(f"s_mul_i32 s{S_T0}, s{S_KST}, {self.BKS * 2}")
        a(f"s_add_u32 s{S_OFFA}, s{S_OFFA}, s{S_T0}")
        a(f"s_mul_i32 s{S_T0}, s{S_KST}, 0x{self.BKS * self.ldw:x}")
        a(f"s_add_u32 s{S_OFFW}, s{S_OFFW}, s{S_T0}")

    def zero_acc(self):
        for row in self.acc:
            for r in row:
                for j in range(4):
                    self.a(f"v_mov_b32 v{r + j}, 0")

    def dma_items(self, buf):
        base = buf * self.SS
        it = []
        for ia in range(self.NA):
            it.append([f"s_add_u32 m0, s{S_MA}, 0x{base + ia * 1024:x}", "s_nop 0",
                       f"buffer_load_dwordx4 v{self.vA_off[ia]}, s[{S_A}:{S_A + 3}], s{S_OFFA} offen lds"])
        wb = base + self.ABYTES
        for i in range(self.NW):
            step = 1024 if self.WB == 288 else 1056
            g = [f"s_add_u32 m0, s{S_MW}, 0x{wb + i * step:x}"]
            if self.WB == 288 and i == 2:
                g += ["s_mov_b64 exec, 0xffff",
                      f"buffer_load_dwordx4 v{self.vW_off[i]}, s[{S_W}:{S_W + 3}], s{S_OFFW} offen lds",
                      "s_mov_b64 exec, -1"]
            else:
                g += ["s_nop 0", f"buffer_load_dwordx4 v{self.vW_off[i]}, s[{S_W}:{S_W + 3}], s{S_OFFW} offen lds"]
            it.append(g)
        if NOA:
            it = [[x for x in gg if not (x.startswith("buffer_load") and f"s[{S_A}:" in x)] for gg in it]
        if NOW:
            it = [[x for x in gg if not (x.startswith("buffer_load") and f"s[{S_W}:" in x)] for gg in it]
        it.append([f"s_add_u32 s{S_OFFA}, s{S_OFFA}, {self.BKS * 2}",
                   f"s_add_u32 s{S_OFFW}, s{S_OFFW}, 0x{self.BKS * self.ldw:x}",
                   f"s_add_u32 s{S_KST}, s{S_KST}, 1",
                   f"s_cmp_eq_u32 s{S_KST}, {self.NST}",
                   f"s_cselect_b32 s{S_T2}, 0x{self.NST * self.BKS * 2:x}, 0",
                   f"s_cselect_b32 s{S_T3}, 0x{self.NST * self.BKS * self.ldw:x}, 0",
                   f"s_cselect_b32 s{S_KST}, 0, s{S_KST}",
                   f"s_sub_u32 s{S_OFFA}, s{S_OFFA}, s{S_T2}",
                   f"s_sub_u32 s{S_OFFW}, s{S_OFFW}, s{S_T3}"])
        return it

    def rd(self, regs, off):
        return regs[off >> 16], off & 0xffff

    def frag_reads(self, buf, ks, fb):
        base = buf * self.SS
        out = []
        ka = ks if len(self.vA_rd) == 2 else 0
        ksoff = ks * 32 * 288 if (self.WB == 288 and self.GK == 1) else 0
        sec = 8 * 288 if self.WB == 288 else 512
        for tn in range(self.TN):
            o = base + self.ABYTES + ksoff + tn * 32
            r, im = self.rd(self.vW_rd, o)
            out.append(f"ds_read_b64_tr_b16 {vr(self.fw[fb][tn], 2)}, v{r} offset:{im}")
            r, im = self.rd(self.vW_rd, o + sec)
            out.append(f"ds_read_b64_tr_b16 {vr(self.fw[fb][tn] + 2, 2)}, v{r} offset:{im}")
            if tn == 0:
                for tm in range(self.TM):
                    r, im = self.rd(self.vA_rd[ka], base + tm * 16 * self.RB)
                    out.append(f"ds_read_b128 {vr(self.fa[fb][tm], 4)}, v{r} offset:{im}")
        if NORD:
            out = ["s_nop 0"] * len(out)
        return out

    def mfmas(self, fb):
        out = []
        for tn in range(self.TN):
            for tm in range(self.TM):
                c = vr(self.acc[tn][tm], 4)
                w = vr(self.fw[fb][tn], 4)
                x = vr(self.fa[fb][tm], 4)
                if self.swap:
                    out.append(f"v_mfma_f32_16x16x32_bf16 {c}, {x}, {w}, {c}")
                else:
                    out.append(f"v_mfma_f32_16x16x32_bf16 {c}, {w}, {x}, {c}")
        if NOMFMA:
            out = ["s_nop 0"] * len(out)
        return out

    def stage(self, s_buf, par, issue, vm, has_next):
        a = self.a
        for ks in range(self.KSW):
            last = ks == self.KSW - 1
            a("s_waitcnt lgkmcnt(0)")
            fill = []
            if last:
                if has_next:
                    a(f"s_waitcnt vmcnt({vm})")
                    a("s_barrier")
                    fill += self.frag_reads((s_buf + 1) % self.NS, 0, par ^ 1)
                    if issue:
                        d = self.dma_items(s_buf)
                        f2 = []
                        step = max(1, len(fill) // len(d))
                        di = 0
                        for i, f in enumerate(fill):
                            f2.append(f)
                            if i % step == step - 1 and di < len(d):
                                f2.append(d[di]); di += 1
                        f2 += d[di:]
                        fill = f2
            else:
                fill += self.frag_reads(s_buf, ks + 1, par ^ 1)
            interleave(a, self.mfmas(par), fill)
            par ^= 1
        return par

    def mainloop(self):
        a = self.a
        NS, NST, D = self.NS, self.NST, self.D
        stamp(a, 1)
        a(f"s_waitcnt vmcnt({(PRO - 1) * D})")
        a("s_barrier")
        stamp(a, 2)
        a.many(self.frag_reads(0, 0, 0))
        for b in range(PRO, NS):
            for gg in self.dma_items(b):
                a.many(gg)
        par = 0
        nmain = NST - NS
        r = nmain % NS
        s = 0
        for _ in range(r):
            par = self.stage(s % NS, par, True, (NS - 2) * D, True)
            s += 1
        trips = (nmain - r) // NS
        if trips > 0:
            assert (NS * self.KSW) % 2 == 0
            lab = a.newlabel(self.tag + "_loop")
            a(f"s_mov_b32 s{S_CNT}, {trips}")
            a.label(lab)
            for i in range(NS):
                par = self.stage((s + i) % NS, par, True, (NS - 2) * D, True)
            a(f"s_sub_u32 s{S_CNT}, s{S_CNT}, 1")
            a(f"s_cmp_lg_u32 s{S_CNT}, 0")
            a(f"s_cbranch_scc1 {lab}")
            s += trips * NS
        while s < NST:
            vm = (min(s + NS - 1, NST - 1) - (s + 1)) * D if s + 1 < NST else 0
            par = self.stage(s % NS, par, False, vm, s + 1 < NST)
            s += 1
        a("s_nop 15")
        stamp(a, 3)

    def prologue_dma(self):
        for b in range(PRO):
            for g in self.dma_items(b):
                self.a.many(g)


def common_head(a, nwg, endlab):
    a(f"s_cmp_ge_u32 s2, {nwg}")
    a(f"s_cbranch_scc1 {endlab}")
    stamp(a, 0)


def wave_ids(a, g):
    a(f"v_lshrrev_b32 v{g.vT}, 6, v0")
    a(f"v_and_b32 v{g.vL}, 63, v0")
    a("s_nop 0")
    a(f"v_readfirstlane_b32 s{S_WAVE}, v{g.vT}")
    a("s_nop 3")
    gm = g.GM.bit_length() - 1
    gn = g.GN.bit_length() - 1
    a(f"s_and_b32 s{S_WM}, s{S_WAVE}, {g.GM - 1}")
    a(f"s_lshr_b32 s{S_T0}, s{S_WAVE}, {gm}")
    a(f"s_and_b32 s{S_WN}, s{S_T0}, {g.GN - 1}")
    a(f"s_lshr_b32 s{S_GK}, s{S_T0}, {gn}")


def gen_kv(a):
    name = "kv_proj_kernel"
    a.begin_kernel(name)
    end = "L_kv_end"
    common_head(a, 256, end)
    gK = Gemm(a, "kvk", 256, 256, 32, 4, 4, 2, 1, 512, 1024, 8192, "K", swap=False)
    gV = Gemm(a, "kvv", 256, 256, 32, 4, 4, 2, 1, 512, 1024, 8192, "V", swap=True)
    va = VAlloc(1)
    gK.alloc(va)
    va2 = VAlloc(1)
    gV.alloc(va2)
    g = gK
    a(f"s_load_dwordx2 s[{S_P0}:{S_P0 + 1}], s[0:1], {KARG['ckv']}")
    a(f"s_load_dwordx4 s[{S_P0 + 4}:{S_P0 + 7}], s[0:1], {KARG['wuk']}")
    a(f"s_load_dwordx2 s[{S_P0 + 2}:{S_P0 + 3}], s[0:1], {KARG['ws']}")
    a(f"s_load_dwordx2 s[52:53], s[0:1], {KARG['x']}")
    wave_ids(a, g)
    a(f"s_and_b32 s{S_T0}, s2, 7")
    a(f"s_lshr_b32 s{S_T1}, s2, 3")
    a(f"s_and_b32 s{S_T2}, s{S_T1}, 3")
    a(f"s_lshl_b32 s{S_T0}, s{S_T0}, 2")
    a(f"s_add_u32 s{S_T0}, s{S_T0}, s{S_T2}")
    a(f"s_lshr_b32 s{S_T1}, s{S_T1}, 2")
    a(f"s_lshl_b32 s{S_M0}, s{S_T1}, 8")
    a(f"s_and_b32 s{S_T2}, s{S_T0}, 15")
    a(f"s_lshl_b32 s{S_N0}, s{S_T2}, 8")
    a(f"s_lshr_b32 s{S_SPLIT}, s{S_T0}, 4")
    a("s_waitcnt lgkmcnt(0)")
    srd_from(a, S_A, S_P0, 0, 2048 * 1024)
    a(f"s_cmp_eq_u32 s{S_SPLIT}, 0")
    a(f"s_cselect_b32 s{S_W}, s{S_P0 + 4}, s{S_P0 + 6}")
    a(f"s_cselect_b32 s{S_W + 1}, s{S_P0 + 5}, s{S_P0 + 7}")
    a(f"s_mov_b32 s{S_W + 2}, 0x{512 * 8192:x}")
    a(f"s_mov_b32 s{S_W + 3}, 0x00020000")
    a(f"s_mov_b32 s{S_T1}, 0x{WS_V:x}")
    a(f"s_cselect_b32 s{S_T0}, 0x{WS_K:x}, s{S_T1}")
    a(f"s_add_u32 s{S_O}, s{S_P0 + 2}, s{S_T0}")
    a(f"s_addc_u32 s{S_O + 1}, s{S_P0 + 3}, 0")
    a(f"s_mov_b32 s{S_O + 2}, 0x{16 * MB:x}")
    a(f"s_mov_b32 s{S_O + 3}, 0x00020000")
    srd_from(a, S_X, 52, 0, 2048 * 1152)
    srd_from(a, S_Y, S_P0 + 2, WS_XN, 2048 * 1152)
    a(f"s_mov_b32 s{S_OFFA}, 0")
    a(f"s_mov_b32 s{S_OFFW}, 0")
    g.rotate(2, 5)
    if os.environ.get("TOUCH", "0") == "1":
        vd = max(va.hi, va2.hi)
        a(f"s_lshr_b32 s{S_T0}, s2, 3")
        a(f"s_lshl_b32 s{S_T1}, s{S_T0}, 3")
        a(f"s_add_u32 s{S_T1}, s{S_T1}, s{S_WAVE}")
        a(f"s_lshl_b32 s{S_T1}, s{S_T1}, 13")
        a(f"v_lshlrev_b32 v{g.vT}, 7, v{g.vL}")
        a(f"buffer_load_dword v{vd}, v{g.vT}, s[{S_A}:{S_A + 3}], s{S_T1} offen")
        a(f"s_and_b32 s{S_T1}, s{S_WAVE}, 3")
        a(f"s_lshl_b32 s{S_T1}, s{S_T1}, 2")
        a(f"s_lshl_b32 s{S_T0}, s{S_T0}, 4")
        a(f"s_add_u32 s{S_T0}, s{S_T0}, s{S_T1}")
        a(f"s_lshl_b32 s{S_T0}, s{S_T0}, 13")
        a(f"s_and_b32 s{S_T1}, s2, 3")
        a(f"s_lshl_b32 s{S_T1}, s{S_T1}, 11")
        a(f"s_add_u32 s{S_T0}, s{S_T0}, s{S_T1}")
        a(f"v_lshrrev_b32 v{g.vT}, 4, v{g.vL}")
        a(f"v_lshlrev_b32 v{g.vT}, 13, v{g.vT}")
        a(f"v_and_b32 v{g.vT + 1}, 15, v{g.vL}")
        a(f"v_lshl_add_u32 v{g.vT}, v{g.vT + 1}, 7, v{g.vT}")
        a(f"buffer_load_dword v{vd}, v{g.vT}, s[{S_W}:{S_W + 3}], s{S_T0} offen")
    ln_base = g.fa[0][0]
    raw = ln_base
    vals = [ln_base + 8 + i for i in range(16)]
    tmp = ln_base + 24
    voff = ln_base + 30
    a(f"s_lshl_b32 s{S_T0}, s2, 3")
    a(f"s_add_u32 s{S_T0}, s{S_T0}, s{S_WAVE}")
    a(f"s_mul_i32 s{S_T3}, s{S_T0}, 1152")
    a(f"v_lshlrev_b32 v{voff}, 5, v{g.vL}")
    mask = (1 << 36) - 1
    set_exec(a, mask)
    a(f"buffer_load_dwordx4 {vr(raw, 4)}, v{voff}, s[{S_X}:{S_X + 3}], s{S_T3} offen")
    a(f"buffer_load_dwordx4 {vr(raw + 4, 4)}, v{voff}, s[{S_X}:{S_X + 3}], s{S_T3} offen offset:16")
    a("s_mov_b64 exec, -1")
    a(f"s_lshr_b32 s38, s{S_T0}, 5")
    a(f"s_mul_i32 s38, s38, 36864")
    a(f"s_and_b32 s39, s{S_T0}, 31")
    a(f"s_lshl_b32 s39, s39, 4")
    a(f"s_add_u32 s38, s38, s39")
    g.setup_addrs()
    g.prologue_dma()
    if os.environ.get('PREF', '1') == '1':
        vd = max(va.hi, va2.hi)
        va.get()
        a(f"s_load_dwordx2 s[56:57], s[0:1], {KARG['wq']}")
        a(f"s_lshl_b32 s{S_T0}, s2, 3")
        a(f"s_add_u32 s{S_T0}, s{S_T0}, s{S_WAVE}")
        a(f"s_lshl_b32 s{S_T0}, s{S_T0}, 13")
        a(f"v_lshlrev_b32 v{g.vT}, 7, v{g.vL}")
        a("s_waitcnt lgkmcnt(0)")
        srd_from(a, S_X, 56, 0, 576 * 8192)
        a(f"buffer_load_dword v{vd}, v{g.vT}, s[{S_X}:{S_X + 3}], s{S_T0} offen")
        a(f"s_waitcnt vmcnt({PRO * g.D + 1})")
    else:
        a(f"s_waitcnt vmcnt({PRO * g.D})")
    for i in range(8):
        a(f"v_lshlrev_b32 v{vals[2 * i]}, 16, v{raw + i}")
        a(f"v_and_b32 v{vals[2 * i + 1]}, 0xffff0000, v{raw + i}")
    emit_ln(a, vals, mask, tmp, [raw + i for i in range(8)])
    set_exec(a, mask)
    a(f"v_lshlrev_b32 v{voff}, 10, v{g.vL}")
    a(f"buffer_store_dwordx4 {vr(raw, 4)}, v{voff}, s[{S_Y}:{S_Y + 3}], s38 offen")
    a(f"buffer_store_dwordx4 {vr(raw + 4, 4)}, v{voff}, s[{S_Y}:{S_Y + 3}], s38 offen offset:512")
    a("s_mov_b64 exec, -1")
    a("s_nop 1")
    g.zero_acc()
    a(f"s_cmp_eq_u32 s{S_SPLIT}, 0")
    a("s_cbranch_scc0 L_kv_v")
    for gg in (gK, gV):
        if gg is gV:
            a.label("L_kv_v")
        gg.mainloop()
        T = gg.vT
        L = gg.vL
        a(f"s_lshr_b32 s{S_T0}, s{S_N0}, 7")
        a(f"s_add_u32 s{S_T0}, s{S_T0}, s{S_WN}")
        a(f"s_lshl_b32 s{S_T0}, s{S_T0}, 19")
        a(f"s_lshr_b32 s{S_T1}, s{S_M0}, 6")
        a(f"s_add_u32 s{S_T1}, s{S_T1}, s{S_WM}")
        a(f"s_lshl_b32 s{S_T1}, s{S_T1}, 14")
        a(f"s_add_u32 s{S_T0}, s{S_T0}, s{S_T1}")
        cst = 1024 if gg is gK else 2048
        a(f"v_bfe_u32 v{T}, v{L}, 4, 1")
        a(f"v_mul_u32_u24 v{T}, {cst}, v{T}")
        a(f"v_and_b32 v{T + 1}, 15, v{L}")
        a(f"v_lshl_add_u32 v{T}, v{T + 1}, 4, v{T}")
        a(f"v_lshrrev_b32 v{T + 1}, 5, v{L}")
        a(f"v_lshl_add_u32 v{T}, v{T + 1}, 8, v{T}")
        if gg is gK:
            prs = [((tn, tm), (tn, tm + 1), tn * 2048, tm * 256) for tn in range(gg.TN) for tm in range(0, gg.TM, 2)]
        else:
            prs = [((tn, tm), (tn + 1, tm), tm * 4096, tn * 256) for tm in range(gg.TM) for tn in range(0, gg.TN, 2)]
        stg = [gg.fa[0][0], gg.fa[0][1], gg.fa[0][2], gg.fa[0][3]]
        for k, (X, Y, so, im) in enumerate(prs):
            p = stg[k & 3]
            cx, cy = gg.acc[X[0]][X[1]], gg.acc[Y[0]][Y[1]]
            a(f"v_cvt_pk_bf16_f32 v{p}, v{cx}, v{cx + 1}")
            a(f"v_cvt_pk_bf16_f32 v{p + 1}, v{cx + 2}, v{cx + 3}")
            a(f"v_cvt_pk_bf16_f32 v{p + 2}, v{cy}, v{cy + 1}")
            a(f"v_cvt_pk_bf16_f32 v{p + 3}, v{cy + 2}, v{cy + 3}")
            a(f"s_add_u32 s{S_T1}, s{S_T0}, {so}")
            a("s_nop 0")
            a(f"v_permlane32_swap_b32 v{p}, v{p + 2}")
            a(f"v_permlane32_swap_b32 v{p + 1}, v{p + 3}")
            a(f"buffer_store_dwordx4 {vr(p, 4)}, v{T}, s[{S_O}:{S_O + 3}], s{S_T1} offen offset:{im}")
        stamp(a, 4)
        stamp_dump(a, 5, 0, T, S_WAVE)
        a("s_endpgm")
    a.label(end)
    a("s_endpgm")
    a.end_kernel(name, max(va.hi, va2.hi))
    return (name, 256, 512, gK.LDS)


def gen_splitk(a, name, act_off, act_ld, wkey, klen, w_perm, out_off):
    a.begin_kernel(name)
    end = f"L_{name}_end"
    common_head(a, 256, end)
    g = Gemm(a, name[:4], 128, 144, 64, 4, 4, 1, 2, klen, act_ld, 1152, "P", w_perm=w_perm)
    va = VAlloc(1)
    g.alloc(va)
    a(f"s_load_dwordx2 s[{S_P0}:{S_P0 + 1}], s[0:1], {KARG[wkey]}")
    a(f"s_load_dwordx2 s[{S_P0 + 2}:{S_P0 + 3}], s[0:1], {KARG['ws']}")
    wave_ids(a, g)
    a(f"s_and_b32 s{S_SPLIT}, s2, 3")
    a(f"s_bfe_u32 s{S_T0}, s2, 0x10002")
    a(f"s_lshr_b32 s{S_T1}, s2, 3")
    a(f"s_and_b32 s{S_T2}, s{S_T1}, 3")
    a(f"s_mul_i32 s{S_N0}, s{S_T2}, 144")
    a(f"s_lshr_b32 s{S_T1}, s{S_T1}, 2")
    a(f"s_lshl_b32 s{S_T0}, s{S_T0}, 3")
    a(f"s_add_u32 s{S_T1}, s{S_T1}, s{S_T0}")
    a(f"s_lshl_b32 s{S_M0}, s{S_T1}, 7")
    a("s_waitcnt lgkmcnt(0)")
    srd_from(a, S_A, S_P0 + 2, act_off, 2048 * act_ld)
    srd_from(a, S_W, S_P0, 0, klen * 4 * 1152)
    srd_from(a, S_O, S_P0 + 2, out_off, 4 * 2048 * 2304)
    a(f"s_mul_i32 s{S_OFFA}, s{S_SPLIT}, {klen * 2}")
    a(f"s_mul_i32 s{S_OFFW}, s{S_SPLIT}, {klen * 1152}")
    g.rotate(2, 5)
    g.setup_addrs()
    g.prologue_dma()
    g.zero_acc()
    g.mainloop()
    T, L = g.vT, g.vL
    a("s_barrier")
    a(f"s_mul_i32 s{S_T0}, s{S_WM}, 18432")
    a(f"v_lshlrev_b32 v{T}, 4, v{L}")
    a(f"v_add_u32 v{T}, s{S_T0}, v{T}")
    a(f"s_cmp_eq_u32 s{S_GK}, 0")
    a(f"s_cbranch_scc1 L_{name}_g0")
    j = 0
    for tn in range(g.TN):
        for tm in range(g.TM):
            a(f"ds_write_b128 v{T}, {vr(g.acc[tn][tm], 4)} offset:{j * 1024}")
            j += 1
    a("s_waitcnt lgkmcnt(0)")
    a("s_barrier")
    a("s_endpgm")
    a.label(f"L_{name}_g0")
    a("s_barrier")
    j = 0
    rd = []
    for tn in range(g.TN):
        for tm in range(g.TM):
            rd.append((g.acc[tn][tm], g.fw[j & 1][j >> 1] if (j >> 1) < g.TN else g.fa[j & 1][0]))
            a(f"ds_read_b128 {vr(rd[-1][1], 4)}, v{T} offset:{j * 1024}")
            j += 1
    a(f"s_mul_i32 s{S_T0}, s{S_SPLIT}, {2048 * 2304}")
    a(f"s_mul_i32 s{S_T1}, s{S_M0}, 2304")
    a(f"s_add_u32 s{S_T0}, s{S_T0}, s{S_T1}")
    a(f"s_lshl_b32 s{S_T1}, s{S_N0}, 2")
    a(f"s_add_u32 s{S_T0}, s{S_T0}, s{S_T1}")
    a(f"s_lshl_b32 s{S_T1}, s{S_WM}, 5")
    a(f"v_and_b32 v{T + 1}, 15, v{L}")
    a(f"v_add_u32 v{T + 1}, s{S_T1}, v{T + 1}")
    a(f"v_mul_u32_u24 v{T + 1}, 2304, v{T + 1}")
    a(f"v_lshrrev_b32 v{T + 2}, 4, v{L}")
    a(f"v_lshl_add_u32 v{T + 1}, v{T + 2}, 4, v{T + 1}")
    a(f"v_add_u32 v{T + 2}, {16 * 2304}, v{T + 1}")
    j = 0
    for tn in range(g.TN):
        for tm in range(g.TM):
            c, f = rd[j]
            a(f"s_waitcnt lgkmcnt({min(15, len(rd) - 1 - j)})")
            for q in range(4):
                a(f"v_add_f32 v{c + q}, v{c + q}, v{f + q}")
            a(f"buffer_store_dwordx4 {vr(c, 4)}, v{T + 1 + tm}, s[{S_O}:{S_O + 3}], s{S_T0} offen offset:{tn * 64}")
            j += 1
    stamp(a, 4)
    stamp_dump(a, 5, 2 if name.startswith("oproj") else 5, T, S_WAVE)
    a.label(end)
    a("s_endpgm")
    a.end_kernel(name, va.hi)
    return (name, 256, 512, g.LDS)


def gen_up(a):
    name = "mlp_up_kernel"
    a.begin_kernel(name)
    end = f"L_{name}_end"
    common_head(a, 256, end)
    g = Gemm(a, "up", 256, 144, 64, 3, 8, 1, 1, 576, 1152, 9216, "U", w_perm=True)
    va = VAlloc(1)
    g.alloc(va)
    bias = [va.get(2, 2) for _ in range(g.TN)]
    a(f"s_load_dwordx4 s[{S_P0 + 4}:{S_P0 + 7}], s[0:1], {KARG['w1']}")
    a(f"s_load_dwordx2 s[{S_P0 + 2}:{S_P0 + 3}], s[0:1], {KARG['ws']}")
    wave_ids(a, g)
    a(f"s_and_b32 s{S_T0}, s2, 7")
    a(f"s_lshr_b32 s{S_T1}, s2, 3")
    a(f"s_and_b32 s{S_T2}, s{S_T1}, 3")
    a(f"s_lshl_b32 s{S_T0}, s{S_T0}, 2")
    a(f"s_add_u32 s{S_T0}, s{S_T0}, s{S_T2}")
    a(f"s_lshr_b32 s{S_T1}, s{S_T1}, 2")
    a(f"s_lshl_b32 s{S_M0}, s{S_T1}, 8")
    a(f"s_mul_i32 s{S_N0}, s{S_T0}, 144")
    a("s_waitcnt lgkmcnt(0)")
    srd_from(a, S_A, S_P0 + 2, WS_HN, 2048 * 1152)
    srd_from(a, S_W, S_P0 + 4, 0, 576 * 9216)
    srd_from(a, S_O, S_P0 + 2, WS_ACT, 2048 * 9216)
    srd_from(a, S_X, S_P0 + 6, 0, 9216)
    a(f"s_mov_b32 s{S_OFFA}, 0")
    a(f"s_mov_b32 s{S_OFFW}, 0")
    g.rotate(1, 2)
    T, L = g.vT, g.vL
    a(f"v_lshrrev_b32 v{T}, 4, v{L}")
    a(f"v_lshlrev_b32 v{T}, 3, v{T}")
    a(f"s_lshl_b32 s{S_T0}, s{S_N0}, 1")
    for tn in range(g.TN):
        a(f"buffer_load_dwordx2 {vr(bias[tn], 2)}, v{T}, s[{S_X}:{S_X + 3}], s{S_T0} offen offset:{tn * 32}")
    g.setup_addrs()
    g.prologue_dma()
    g.zero_acc()
    g.mainloop()
    a(f"s_mul_i32 s{S_T0}, s{S_M0}, 9216")
    a(f"s_lshl_b32 s{S_T1}, s{S_N0}, 1")
    a(f"s_add_u32 s{S_T0}, s{S_T0}, s{S_T1}")
    a(f"s_lshl_b32 s{S_T1}, s{S_WM}, 5")
    a(f"v_and_b32 v{T}, 15, v{L}")
    a(f"v_add_u32 v{T}, s{S_T1}, v{T}")
    a(f"v_mul_u32_u24 v{T}, 9216, v{T}")
    a(f"v_lshrrev_b32 v{T + 1}, 4, v{L}")
    a(f"v_lshl_add_u32 v{T}, v{T + 1}, 3, v{T}")
    a(f"v_add_u32 v{T + 1}, {16 * 9216}, v{T}")
    bf = g.fw[0][0]
    k = 0
    for tn in range(g.TN):
        b = bias[tn]
        a(f"v_lshlrev_b32 v{bf}, 16, v{b}")
        a(f"v_and_b32 v{bf + 1}, 0xffff0000, v{b}")
        a(f"v_lshlrev_b32 v{bf + 2}, 16, v{b + 1}")
        a(f"v_and_b32 v{bf + 3}, 0xffff0000, v{b + 1}")
        for tm in range(g.TM):
            c = g.acc[tn][tm]
            p = T + 2 + 2 * (k & 1)
            k += 1
            for q in range(4):
                a(f"v_add_f32 v{c + q}, v{c + q}, v{bf + q}")
            for q in range(4):
                a(f"v_max_f32 v{c + q}, 0, v{c + q}")
            for q in range(4):
                a(f"v_mul_f32 v{c + q}, v{c + q}, v{c + q}")
            a(f"v_cvt_pk_bf16_f32 v{p}, v{c}, v{c + 1}")
            a(f"v_cvt_pk_bf16_f32 v{p + 1}, v{c + 2}, v{c + 3}")
            a(f"buffer_store_dwordx2 {vr(p, 2)}, v{T + tm}, s[{S_O}:{S_O + 3}], s{S_T0} offen offset:{tn * 32}")
    stamp(a, 4)
    stamp_dump(a, 5, 4, T, S_WAVE)
    a.label(end)
    a("s_endpgm")
    a.end_kernel(name, va.hi)
    return (name, 256, 512, g.LDS)


def gen_reduce(a, name, part_off, first):
    a.begin_kernel(name)
    end = f"L_{name}_end"
    common_head(a, 512, end)
    a(f"s_load_dwordx2 s[{S_P0 + 2}:{S_P0 + 3}], s[0:1], {KARG['ws']}")
    if first:
        a(f"s_load_dwordx2 s[{S_P0}:{S_P0 + 1}], s[0:1], {KARG['x']}")
    else:
        a(f"s_load_dwordx4 s[{S_P0 + 4}:{S_P0 + 7}], s[0:1], {KARG['b2']}")
    vL, vT = 1, 2
    a(f"v_lshrrev_b32 v{vT}, 6, v0")
    a(f"v_and_b32 v{vL}, 63, v0")
    a("s_nop 0")
    a(f"v_readfirstlane_b32 s{S_WAVE}, v{vT}")
    a("s_nop 3")
    a(f"s_lshl_b32 s{S_T0}, s2, 2")
    a(f"s_add_u32 s{S_T0}, s{S_T0}, s{S_WAVE}")
    a(f"s_mul_i32 s{S_T1}, s{S_T0}, 2304")
    a(f"s_mul_i32 s{S_T2}, s{S_T0}, 1152")
    a("s_waitcnt lgkmcnt(0)")
    srd_from(a, S_A, S_P0 + 2, part_off, 4 * 2048 * 2304)
    if first:
        srd_from(a, S_X, S_P0, 0, 2048 * 1152)
        srd_from(a, S_O, S_P0 + 2, WS_H, 2048 * 1152)
        srd_from(a, S_Y, S_P0 + 2, WS_HN, 2048 * 1152)
    else:
        srd_from(a, S_X, S_P0 + 2, WS_H, 2048 * 1152)
        srd_from(a, S_O, S_P0 + 6, 0, 2048 * 1152)
        srd_from(a, S_Y, S_P0 + 4, 0, 1152)
    vo4, vo2 = 4, 5
    a(f"v_mul_u32_u24 v{vo4}, 48, v{vL}")
    a(f"v_mul_u32_u24 v{vo2}, 24, v{vL}")
    P = 8
    X = 56
    B = 62
    V = 68
    TM = 80
    mask = (1 << 48) - 1
    set_exec(a, mask)
    for s in range(4):
        if s:
            a(f"s_add_u32 s{S_T1}, s{S_T1}, {2048 * 2304}")
        for j in range(3):
            a(f"buffer_load_dwordx4 {vr(P + s * 12 + j * 4, 4)}, v{vo4}, s[{S_A}:{S_A + 3}], s{S_T1} offen offset:{j * 16}")
    for j in range(3):
        a(f"buffer_load_dwordx2 {vr(X + 2 * j, 2)}, v{vo2}, s[{S_X}:{S_X + 3}], s{S_T2} offen offset:{j * 8}")
    if not first:
        for j in range(3):
            a(f"buffer_load_dwordx2 {vr(B + 2 * j, 2)}, v{vo2}, s[{S_Y}:{S_Y + 3}], 0 offen offset:{j * 8}")
    a("s_waitcnt vmcnt(0)")
    for i in range(12):
        a(f"v_add_f32 v{P + i}, v{P + i}, v{P + 12 + i}")
        a(f"v_add_f32 v{P + 24 + i}, v{P + 24 + i}, v{P + 36 + i}")
    for i in range(12):
        a(f"v_add_f32 v{P + i}, v{P + i}, v{P + 24 + i}")
    for i in range(6):
        s0, s1 = P + 2 * i, P + 2 * i + 1
        a(f"v_cvt_pk_bf16_f32 v{TM}, v{s0}, v{s1}")
        a(f"v_lshlrev_b32 v{s0}, 16, v{TM}")
        a(f"v_and_b32 v{s1}, 0xffff0000, v{TM}")
        if not first:
            a(f"v_lshlrev_b32 v{TM}, 16, v{B + i}")
            a(f"v_and_b32 v{TM + 1}, 0xffff0000, v{B + i}")
            a(f"v_add_f32 v{s0}, v{s0}, v{TM}")
            a(f"v_add_f32 v{s1}, v{s1}, v{TM + 1}")
            a(f"v_cvt_pk_bf16_f32 v{TM}, v{s0}, v{s1}")
            a(f"v_lshlrev_b32 v{s0}, 16, v{TM}")
            a(f"v_and_b32 v{s1}, 0xffff0000, v{TM}")
        a(f"v_lshlrev_b32 v{TM}, 16, v{X + i}")
        a(f"v_and_b32 v{TM + 1}, 0xffff0000, v{X + i}")
        a(f"v_add_f32 v{s0}, v{s0}, v{TM}")
        a(f"v_add_f32 v{s1}, v{s1}, v{TM + 1}")
        a(f"v_cvt_pk_bf16_f32 v{X + i}, v{s0}, v{s1}")
        if first:
            a(f"v_lshlrev_b32 v{V + 2 * i}, 16, v{X + i}")
            a(f"v_and_b32 v{V + 2 * i + 1}, 0xffff0000, v{X + i}")
    for j in range(3):
        a(f"buffer_store_dwordx2 {vr(X + 2 * j, 2)}, v{vo2}, s[{S_O}:{S_O + 3}], s{S_T2} offen offset:{j * 8}")
    a("s_mov_b64 exec, -1")
    if first:
        emit_ln(a, [V + i for i in range(12)], mask, TM, [B + i for i in range(6)])
        set_exec(a, mask)
        for j in range(3):
            a(f"buffer_store_dwordx2 {vr(B + 2 * j, 2)}, v{vo2}, s[{S_Y}:{S_Y + 3}], s{S_T2} offen offset:{j * 8}")
    a.label(end)
    a("s_endpgm")
    a.end_kernel(name, 88)
    return (name, 512, 256, 0)
```

```python
from asmlib import *
from layout import *
from gemm import (S_A, S_W, S_O, S_X, S_Y, S_WAVE, S_WM, S_WN, S_GK, S_M0, S_N0, S_SPLIT, S_OFFA, S_OFFW, S_MA, S_MW,
                  S_T0, S_T1, S_T2, S_T3, S_P0, emit_ln, common_head)

WST = 64 * 288
import os
NOMFMA = os.environ.get('NOMFMA') == '1'
NOW = os.environ.get('NOW') == '1'
NOA = os.environ.get('NOA') == '1'
ROT2 = int(os.environ.get('ROT2', '0'))
NS_S = int(os.environ.get('NS_S', '4'))
PA_S = int(os.environ.get('PA_S', '4'))
NS_U = int(os.environ.get('NS_U', '3'))
PA_U = int(os.environ.get('PA_U', '4'))
UPMAP = int(os.environ.get('UPMAP', '0'))
S_KA, S_KWS = 54, 55


class VM:
    def __init__(self):
        self.ops = []

    def add(self, tag):
        self.ops.append(tag)

    def need(self, tags):
        last = max((i for i, t in enumerate(self.ops) if t in tags), default=-1)
        return len(self.ops) - 1 - last


class Gemm2:
    def __init__(self, a, tag, BM, GK, KLEN, mstride, ldw, NS, PA, w_perm):
        self.a, self.tag = a, tag
        self.BM, self.GK = BM, GK
        self.GM = 8 // GK
        assert BM == self.GM * 32
        self.KSW = 2 // GK
        self.NST = KLEN // 64
        self.NK = self.NST * self.KSW
        self.mstride, self.ldw, self.NS, self.PA, self.w_perm = mstride, ldw, NS, PA, w_perm
        self.TM, self.TN = 2, 9
        self.LDS = NS * WST
        self.vm = VM()

    def alloc(self, va):
        self.vL = va.get()
        self.vT = va.get(10)
        self.vA = [va.get() for _ in range(2)]
        self.vW_off = [va.get() for _ in range(3)]
        self.nb = (self.LDS + 65535) // 65536
        self.vW_rd = [va.get() for _ in range(self.nb)]
        self.fa = [[va.get(4, 4) for _ in range(2)] for _ in range(self.PA + 1)]
        self.fw = [[va.get(4, 4) for _ in range(9)] for _ in range(2)]
        self.acc = [[va.get(4, 4) for _ in range(2)] for _ in range(9)]

    def wave_ids(self):
        a = self.a
        a(f"v_lshrrev_b32 v{self.vT}, 6, v0")
        a(f"v_and_b32 v{self.vL}, 63, v0")
        a("s_nop 0")
        a(f"v_readfirstlane_b32 s{S_WAVE}, v{self.vT}")
        a("s_nop 3")
        gm = self.GM.bit_length() - 1
        a(f"s_and_b32 s{S_WM}, s{S_WAVE}, {self.GM - 1}")
        a(f"s_lshr_b32 s{S_GK}, s{S_WAVE}, {gm}")

    def setup_dma(self):
        a = self.a
        L, T = self.vL, self.vT
        a(f"s_lshr_b32 s{S_T0}, s{S_M0}, 4")
        a(f"s_lshl_b32 s{S_T1}, s{S_WM}, 1")
        a(f"s_add_u32 s{S_T0}, s{S_T0}, s{S_T1}")
        a(f"s_mul_i32 s{S_T0}, s{S_T0}, {self.mstride}")
        a(f"s_add_u32 s{S_OFFA}, s{S_OFFA}, s{S_T0}")
        if self.GK == 2:
            a(f"s_lshl_b32 s{S_T0}, s{S_GK}, 10")
            a(f"s_add_u32 s{S_OFFA}, s{S_OFFA}, s{S_T0}")
        a(f"v_lshlrev_b32 v{self.vA[0]}, 4, v{L}")
        a(f"v_add_u32 v{self.vA[1]}, 0x{self.mstride:x}, v{self.vA[0]}")
        a(f"s_lshl_b32 s{S_T2}, s{S_N0}, 1")
        a(f"s_mov_b32 s{S_T1}, {self.ldw}")
        a(f"s_lshl_b32 s{S_T0}, s{S_WAVE}, 3")
        for i in range(3):
            a(f"v_add_u32 v{T}, {64 * i}, v{L}")
            a(f"v_mul_u32_u24 v{T + 1}, 57, v{T}")
            a(f"v_lshrrev_b32 v{T + 1}, 10, v{T + 1}")
            a(f"v_mul_u32_u24 v{T + 2}, 18, v{T + 1}")
            a(f"v_sub_u32 v{T + 2}, v{T}, v{T + 2}")
            a(f"v_add_u32 v{T + 1}, s{S_T0}, v{T + 1}")
            if self.w_perm:
                a(f"v_bfe_u32 v{T + 3}, v{T + 1}, 2, 1")
                a(f"v_bfe_u32 v{T + 4}, v{T + 1}, 3, 1")
                a(f"v_and_b32 v{T + 1}, 0xfffffff3, v{T + 1}")
                a(f"v_lshl_or_b32 v{T + 1}, v{T + 3}, 3, v{T + 1}")
                a(f"v_lshl_or_b32 v{T + 1}, v{T + 4}, 2, v{T + 1}")
            a(f"v_mul_lo_u32 v{T + 1}, v{T + 1}, s{S_T1}")
            a(f"v_lshl_add_u32 v{T + 1}, v{T + 2}, 4, v{T + 1}")
            a(f"v_add_u32 v{self.vW_off[i]}, s{S_T2}, v{T + 1}")
        a(f"s_mul_i32 s{S_MW}, s{S_WAVE}, {144 * 16}")

    def rotate(self, cm, cn):
        a = self.a
        if not ROT2:
            return
        a(f"s_lshr_b32 s{S_T0}, s2, 3")
        a(f"s_and_b32 s{S_T1}, s{S_T0}, 3")
        a(f"s_lshr_b32 s{S_T0}, s{S_T0}, 2")
        a(f"s_mul_i32 s{S_T0}, s{S_T0}, {cm}")
        a(f"s_mul_i32 s{S_T1}, s{S_T1}, {cn}")
        a(f"s_add_u32 s{S_KWS}, s{S_T0}, s{S_T1}")
        a(f"s_cmp_ge_u32 s{S_KWS}, {self.NST}")
        a(f"s_cselect_b32 s{S_T0}, {self.NST}, 0")
        a(f"s_sub_u32 s{S_KWS}, s{S_KWS}, s{S_T0}")
        a(f"s_mul_i32 s{S_T0}, s{S_KWS}, 2048")
        a(f"s_add_u32 s{S_OFFA}, s{S_OFFA}, s{S_T0}")
        a(f"s_mul_i32 s{S_T0}, s{S_KWS}, 0x{64 * self.ldw:x}")
        a(f"s_add_u32 s{S_OFFW}, s{S_OFFW}, s{S_T0}")
        a(f"s_mul_i32 s{S_KA}, s{S_KWS}, {self.KSW}")

    def setup_rd(self):
        a = self.a
        L, T = self.vL, self.vT
        w0 = self.vW_rd[0]
        a(f"v_lshrrev_b32 v{T}, 4, v{L}")
        a(f"v_bfe_u32 v{T + 1}, v{L}, 2, 2")
        a(f"v_and_b32 v{T + 2}, 3, v{L}")
        a(f"v_lshrrev_b32 v{T + 3}, 1, v{T}")
        a(f"v_lshl_add_u32 v{T + 1}, v{T + 3}, 4, v{T + 1}")
        a(f"v_and_b32 v{T + 3}, 1, v{T}")
        a(f"v_lshl_add_u32 v{T + 1}, v{T + 3}, 2, v{T + 1}")
        a(f"v_mul_u32_u24 v{T + 1}, 288, v{T + 1}")
        a(f"v_lshl_add_u32 v{w0}, v{T + 2}, 3, v{T + 1}")
        if self.GK == 2:
            a(f"s_mul_i32 s{S_T1}, s{S_GK}, {32 * 288}")
            a(f"v_add_u32 v{w0}, s{S_T1}, v{w0}")
        for k in range(1, self.nb):
            a(f"v_add_u32 v{self.vW_rd[k]}, 0x{65536 * k:x}, v{w0}")
        for row in self.acc:
            for r in row:
                for j in range(4):
                    a(f"v_mov_b32 v{r + j}, 0")

    def w_dma(self, s):
        wb = (s % self.NS) * WST
        it = []
        for i in range(3):
            g = [f"s_add_u32 m0, s{S_MW}, 0x{wb + i * 1024:x}"]
            if i == 2:
                g += ["s_mov_b64 exec, 0xffff",
                      f"buffer_load_dwordx4 v{self.vW_off[i]}, s[{S_W}:{S_W + 3}], s{S_OFFW} offen lds",
                      "s_mov_b64 exec, -1", f"s_add_u32 s{S_OFFW}, s{S_OFFW}, 0x{64 * self.ldw:x}"]
                if ROT2:
                    g += [f"s_add_u32 s{S_KWS}, s{S_KWS}, 1", f"s_cmp_eq_u32 s{S_KWS}, {self.NST}",
                          f"s_cselect_b32 s{S_T3}, 0x{self.NST * 64 * self.ldw:x}, 0",
                          f"s_cselect_b32 s{S_KWS}, 0, s{S_KWS}", f"s_sub_u32 s{S_OFFW}, s{S_OFFW}, s{S_T3}"]
            else:
                g += ["s_nop 0", f"buffer_load_dwordx4 v{self.vW_off[i]}, s[{S_W}:{S_W + 3}], s{S_OFFW} offen lds"]
            if NOW:
                g = [x for x in g if not x.startswith("buffer_load")] + ["s_nop 0"]
            it.append((g, ("W", s)))
        return it

    def a_load(self, g):
        f = self.fa[g % (self.PA + 1)]
        step = 1024 * self.GK
        if NOA:
            return [(["s_nop 0"], ("A", g)), (["s_nop 0"], ("A", g))]
        return [([f"buffer_load_dwordx4 {vr(f[0], 4)}, v{self.vA[0]}, s[{S_A}:{S_A + 3}], s{S_OFFA} offen"], ("A", g)),
                ([f"buffer_load_dwordx4 {vr(f[1], 4)}, v{self.vA[1]}, s[{S_A}:{S_A + 3}], s{S_OFFA} offen",
                  f"s_add_u32 s{S_OFFA}, s{S_OFFA}, {step}"] + ([] if not ROT2 else [
                      f"s_add_u32 s{S_KA}, s{S_KA}, 1", f"s_cmp_eq_u32 s{S_KA}, {self.NK}",
                      f"s_cselect_b32 s{S_T2}, 0x{self.NK * step:x}, 0",
                      f"s_cselect_b32 s{S_KA}, 0, s{S_KA}", f"s_sub_u32 s{S_OFFA}, s{S_OFFA}, s{S_T2}"]), ("A", g))]

    def emit_vm(self, items):
        for g, tag in items:
            self.a.many(g)
            self.vm.add(tag)

    def prologue(self):
        g = 0
        for s in range(self.NS):
            for _ in range(self.KSW):
                if g < self.PA:
                    self.emit_vm(self.a_load(g))
                    g += 1
            self.emit_vm(self.w_dma(s))
        while g < self.PA:
            self.emit_vm(self.a_load(g))
            g += 1

    def frag_reads(self, g, fb):
        s, ks = g // self.KSW, g % self.KSW
        base = (s % self.NS) * WST + (ks * 32 * 288 if self.GK == 1 else 0)
        out = []
        for tn in range(9):
            for h in range(2):
                o = base + tn * 32 + h * 8 * 288
                out.append(f"ds_read_b64_tr_b16 {vr(self.fw[fb][tn] + 2 * h, 2)}, v{self.vW_rd[o >> 16]} offset:{o & 0xffff}")
        return out

    def mainloop(self):
        a = self.a
        stamp(a, 1)
        a(f"s_waitcnt vmcnt({self.vm.need({('W', 0)})})")
        a("s_barrier")
        stamp(a, 2)
        a.many(self.frag_reads(0, 0))
        for g in range(self.NK):
            s, ks = g // self.KSW, g % self.KSW
            last = ks == self.KSW - 1
            par = g & 1
            need = {("A", g)}
            if last and s + 1 < self.NST:
                need.add(("W", s + 1))
            a(f"s_waitcnt vmcnt({self.vm.need(need)}) lgkmcnt(0)")
            if last and s + 1 < self.NST:
                a("s_barrier")
            vmi = []
            if g + self.PA < self.NK:
                vmi += self.a_load(g + self.PA)
            if last and s + self.NS < self.NST:
                vmi += self.w_dma(s + self.NS)
            reads = self.frag_reads(g + 1, par ^ 1) if g + 1 < self.NK else []
            fill = []
            step = max(1, len(reads) // max(1, len(vmi)))
            vi = 0
            for i, r in enumerate(reads):
                fill.append(r)
                if i % step == step - 1 and vi < len(vmi):
                    fill.append(vmi[vi][0]); self.vm.add(vmi[vi][1]); vi += 1
            for k in range(vi, len(vmi)):
                fill.append(vmi[k][0]); self.vm.add(vmi[k][1])
            f = self.fa[g % (self.PA + 1)]
            mf = []
            for tn in range(9):
                for tm in range(2):
                    c = vr(self.acc[tn][tm], 4)
                    mf.append(f"v_mfma_f32_16x16x32_bf16 {c}, {vr(self.fw[par][tn], 4)}, {vr(f[tm], 4)}, {c}")
            if NOMFMA:
                mf = ["s_nop 0"] * len(mf)
            interleave(a, mf, fill)
        a("s_nop 15")
        stamp(a, 3)


def gen_splitk2(a, name, act_off, mstride, wkey, klen, w_perm, out_off, kidx):
    a.begin_kernel(name)
    end = f"L_{name}_end"
    common_head(a, 256, end)
    g = Gemm2(a, name[:4], 128, 2, klen, mstride, 1152, NS_S, PA_S, w_perm)
    va = VAlloc(1)
    g.alloc(va)
    a(f"s_load_dwordx2 s[{S_P0}:{S_P0 + 1}], s[0:1], {KARG[wkey]}")
    a(f"s_load_dwordx2 s[{S_P0 + 2}:{S_P0 + 3}], s[0:1], {KARG['ws']}")
    g.wave_ids()
    a(f"s_and_b32 s{S_SPLIT}, s2, 3")
    a(f"s_bfe_u32 s{S_T0}, s2, 0x10002")
    a(f"s_lshr_b32 s{S_T1}, s2, 3")
    a(f"s_and_b32 s{S_T2}, s{S_T1}, 3")
    a(f"s_mul_i32 s{S_N0}, s{S_T2}, 144")
    a(f"s_lshr_b32 s{S_T1}, s{S_T1}, 2")
    a(f"s_lshl_b32 s{S_T0}, s{S_T0}, 3")
    a(f"s_add_u32 s{S_T1}, s{S_T1}, s{S_T0}")
    a(f"s_lshl_b32 s{S_M0}, s{S_T1}, 7")
    a(f"s_mul_i32 s{S_OFFA}, s{S_SPLIT}, {klen // 32 * 1024}")
    a(f"s_mul_i32 s{S_OFFW}, s{S_SPLIT}, {klen * 1152}")
    a("s_waitcnt lgkmcnt(0)")
    srd_from(a, S_A, S_P0 + 2, act_off, 128 * mstride)
    srd_from(a, S_W, S_P0, 0, klen * 4 * 1152)
    srd_from(a, S_O, S_P0 + 2, out_off, 4 * 2048 * 2304)
    g.rotate(2, 5)
    g.setup_dma()
    g.prologue()
    g.setup_rd()
    g.mainloop()
    T, L = g.vT, g.vL
    PITCH, REG = 592, 128 * 592
    a("s_barrier")
    a(f"s_lshl_b32 s{S_T0}, s{S_WM}, 5")
    a(f"v_and_b32 v{T}, 15, v{L}")
    a(f"v_add_u32 v{T}, s{S_T0}, v{T}")
    a(f"v_mul_u32_u24 v{T}, {PITCH}, v{T}")
    a(f"v_lshrrev_b32 v{T + 1}, 4, v{L}")
    a(f"v_lshl_add_u32 v{T}, v{T + 1}, 4, v{T}")
    a(f"s_mul_i32 s{S_T0}, s{S_GK}, {REG}")
    a(f"v_add_u32 v{T}, s{S_T0}, v{T}")
    for tn in range(9):
        for tm in range(2):
            a(f"ds_write_b128 v{T}, {vr(g.acc[tn][tm], 4)} offset:{tm * 16 * PITCH + tn * 64}")
    a(f"s_mul_i32 s{S_T0}, s{S_SPLIT}, {2048 * 2304}")
    a(f"s_lshl_b32 s{S_T2}, s{S_WAVE}, 4")
    a(f"s_add_u32 s{S_T1}, s{S_M0}, s{S_T2}")
    a(f"s_mul_i32 s{S_T1}, s{S_T1}, 2304")
    a(f"s_add_u32 s{S_T0}, s{S_T0}, s{S_T1}")
    a(f"s_lshl_b32 s{S_T1}, s{S_N0}, 2")
    a(f"s_add_u32 s{S_T0}, s{S_T0}, s{S_T1}")
    a(f"s_mul_i32 s{S_T2}, s{S_T2}, {PITCH}")
    la = [g.fw[1][i] for i in range(9)]
    for i in range(9):
        r = la[i]
        a(f"v_add_u32 v{T + 1}, {64 * i}, v{L}")
        a(f"v_mul_u32_u24 v{T + 2}, 1821, v{T + 1}")
        a(f"v_lshrrev_b32 v{T + 2}, 16, v{T + 2}")
        a(f"v_mul_u32_u24 v{T + 3}, 36, v{T + 2}")
        a(f"v_sub_u32 v{T + 3}, v{T + 1}, v{T + 3}")
        a(f"v_lshlrev_b32 v{T + 3}, 4, v{T + 3}")
        a(f"v_mul_u32_u24 v{r}, {PITCH}, v{T + 2}")
        a(f"v_add3_u32 v{r}, v{r}, v{T + 3}, s{S_T2}")
        a(f"v_add_u32 v{r + 2}, 0x{REG:x}, v{r}")
        a(f"v_mul_u32_u24 v{r + 1}, 2304, v{T + 2}")
        a(f"v_add_u32 v{r + 1}, v{r + 1}, v{T + 3}")
    a("s_waitcnt lgkmcnt(0)")
    a("s_barrier")
    for i in range(9):
        a(f"ds_read_b128 {vr(g.acc[i][0], 4)}, v{la[i]}")
        a(f"ds_read_b128 {vr(g.acc[i][1], 4)}, v{la[i] + 2}")
    for i in range(9):
        a(f"s_waitcnt lgkmcnt({min(14, 16 - 2 * i)})")
        c, d = g.acc[i][0], g.acc[i][1]
        for q in range(4):
            a(f"v_add_f32 v{c + q}, v{c + q}, v{d + q}")
        a(f"buffer_store_dwordx4 {vr(c, 4)}, v{la[i] + 1}, s[{S_O}:{S_O + 3}], s{S_T0} offen")
    stamp(a, 4)
    stamp_dump(a, 5, kidx, T, S_WAVE)
    a.label(end)
    a("s_endpgm")
    a.end_kernel(name, va.hi)
    return (name, 256, 512, max(g.LDS, 2 * REG))


def gen_up2(a):
    name = "mlp_up_kernel"
    a.begin_kernel(name)
    end = f"L_{name}_end"
    common_head(a, 256, end)
    g = Gemm2(a, "up", 256, 1, 576, 18432, 9216, NS_U, PA_U, True)
    va = VAlloc(1)
    g.alloc(va)
    bias = [va.get(2, 2) for _ in range(9)]
    a(f"s_load_dwordx4 s[{S_P0 + 4}:{S_P0 + 7}], s[0:1], {KARG['w1']}")
    a(f"s_load_dwordx2 s[{S_P0 + 2}:{S_P0 + 3}], s[0:1], {KARG['ws']}")
    g.wave_ids()
    if UPMAP == 0:
        a(f"s_and_b32 s{S_T0}, s2, 7")
        a(f"s_lshr_b32 s{S_T1}, s2, 3")
        a(f"s_and_b32 s{S_T2}, s{S_T1}, 3")
        a(f"s_lshl_b32 s{S_T0}, s{S_T0}, 2")
        a(f"s_add_u32 s{S_SPLIT}, s{S_T0}, s{S_T2}")
        a(f"s_lshr_b32 s{S_T1}, s{S_T1}, 2")
    else:
        a(f"s_bfe_u32 s{S_T0}, s2, 0x20001")
        a(f"s_lshr_b32 s{S_T1}, s2, 3")
        a(f"s_and_b32 s{S_T2}, s{S_T1}, 7")
        a(f"s_lshl_b32 s{S_T0}, s{S_T0}, 3")
        a(f"s_add_u32 s{S_SPLIT}, s{S_T0}, s{S_T2}")
        a(f"s_lshr_b32 s{S_T1}, s{S_T1}, 3")
        a(f"s_and_b32 s{S_T2}, s2, 1")
        a(f"s_lshl_b32 s{S_T2}, s{S_T2}, 2")
        a(f"s_add_u32 s{S_T1}, s{S_T1}, s{S_T2}")
    a(f"s_lshl_b32 s{S_M0}, s{S_T1}, 8")
    a(f"s_mul_i32 s{S_N0}, s{S_SPLIT}, 144")
    a(f"s_mov_b32 s{S_OFFA}, 0")
    a(f"s_mov_b32 s{S_OFFW}, 0")
    a("s_waitcnt lgkmcnt(0)")
    srd_from(a, S_A, S_P0 + 2, WS_HN, 2048 * 1152)
    srd_from(a, S_W, S_P0 + 4, 0, 576 * 9216)
    srd_from(a, S_O, S_P0 + 2, WS_ACT, 2048 * 9216)
    srd_from(a, S_X, S_P0 + 6, 0, 9216)
    T, L = g.vT, g.vL
    g.rotate(1, 2)
    g.setup_dma()
    g.prologue()
    a(f"v_lshrrev_b32 v{T}, 4, v{L}")
    a(f"v_lshlrev_b32 v{T}, 3, v{T}")
    a(f"s_lshl_b32 s{S_T0}, s{S_N0}, 1")
    for tn in range(9):
        a(f"buffer_load_dwordx2 {vr(bias[tn], 2)}, v{T}, s[{S_X}:{S_X + 3}], s{S_T0} offen offset:{tn * 32}")
        g.vm.add(("B", tn))
    g.setup_rd()
    g.mainloop()
    PITCH = 304
    a("s_waitcnt vmcnt(0)")
    a("s_barrier")
    a(f"s_mul_i32 s{S_T2}, s{S_WAVE}, {32 * PITCH}")
    a(f"v_and_b32 v{T}, 15, v{L}")
    a(f"v_mul_u32_u24 v{T}, {PITCH}, v{T}")
    a(f"v_lshrrev_b32 v{T + 1}, 4, v{L}")
    a(f"v_lshl_add_u32 v{T + 2}, v{T + 1}, 3, v{T}")
    a(f"v_add_u32 v{T + 2}, s{S_T2}, v{T + 2}")
    bf = g.fw[0][0]
    k = 0
    for tn in range(9):
        b = bias[tn]
        a(f"v_lshlrev_b32 v{bf}, 16, v{b}")
        a(f"v_and_b32 v{bf + 1}, 0xffff0000, v{b}")
        a(f"v_lshlrev_b32 v{bf + 2}, 16, v{b + 1}")
        a(f"v_and_b32 v{bf + 3}, 0xffff0000, v{b + 1}")
        for tm in range(2):
            c = g.acc[tn][tm]
            for q in range(4):
                a(f"v_add_f32 v{c + q}, v{c + q}, v{bf + q}")
            for q in range(4):
                a(f"v_max_f32 v{c + q}, 0, v{c + q}")
            for q in range(4):
                a(f"v_mul_f32 v{c + q}, v{c + q}, v{c + q}")
            a(f"v_cvt_pk_bf16_f32 v{c}, v{c}, v{c + 1}")
            a(f"v_cvt_pk_bf16_f32 v{c + 1}, v{c + 2}, v{c + 3}")
            a(f"ds_write_b64 v{T + 2}, {vr(c, 2)} offset:{tm * 16 * PITCH + tn * 32}")
    a(f"s_lshr_b32 s{S_T0}, s{S_M0}, 4")
    a(f"s_lshl_b32 s{S_T1}, s{S_WM}, 1")
    a(f"s_add_u32 s{S_T0}, s{S_T0}, s{S_T1}")
    a(f"s_mul_i32 s{S_T0}, s{S_T0}, 147456")
    a(f"s_mul_i32 s{S_T1}, s{S_SPLIT}, 18")
    a(f"v_and_b32 v{T + 3}, 15, v{L}")
    a(f"v_lshlrev_b32 v{T + 3}, 4, v{T + 3}")
    a(f"v_add_u32 v{T}, s{S_T2}, v{T}")
    la = [g.fw[1][i] for i in range(9)]
    a(f"s_mov_b32 s{S_T3}, 147456")
    for i in range(9):
        r = la[i]
        a(f"v_add_u32 v{T + 4}, {4 * i}, v{T + 1}")
        a(f"v_mul_u32_u24 v{T + 5}, 57, v{T + 4}")
        a(f"v_lshrrev_b32 v{T + 5}, 10, v{T + 5}")
        a(f"v_mul_u32_u24 v{T + 6}, 18, v{T + 5}")
        a(f"v_sub_u32 v{T + 6}, v{T + 4}, v{T + 6}")
        a(f"v_mul_u32_u24 v{r}, {16 * PITCH}, v{T + 5}")
        a(f"v_lshl_add_u32 v{r}, v{T + 6}, 4, v{r}")
        a(f"v_add_u32 v{r}, v{r}, v{T}")
        a(f"v_add_u32 v{T + 6}, s{S_T1}, v{T + 6}")
        a(f"v_lshrrev_b32 v{T + 7}, 2, v{T + 6}")
        a(f"v_lshl_add_u32 v{T + 7}, v{T + 7}, 10, v{T + 3}")
        a(f"v_and_b32 v{T + 6}, 3, v{T + 6}")
        a(f"v_lshl_add_u32 v{T + 7}, v{T + 6}, 8, v{T + 7}")
        a(f"v_mul_lo_u32 v{T + 5}, v{T + 5}, s{S_T3}")
        a(f"v_add_u32 v{r + 1}, v{T + 7}, v{T + 5}")
    a("s_waitcnt lgkmcnt(0)")
    for i in range(9):
        a(f"ds_read_b128 {vr(g.acc[i][0], 4)}, v{la[i]}")
    for i in range(9):
        a(f"s_waitcnt lgkmcnt({8 - i})")
        a(f"buffer_store_dwordx4 {vr(g.acc[i][0], 4)}, v{la[i] + 1}, s[{S_O}:{S_O + 3}], s{S_T0} offen")
    stamp(a, 4)
    stamp_dump(a, 5, 4, T, S_WAVE)
    a.label(end)
    a("s_endpgm")
    a.end_kernel(name, va.hi)
    return (name, 256, 512, max(g.LDS, 8 * 32 * PITCH))


def gen_reduce2(a, name, part_off, first):
    a.begin_kernel(name)
    end = f"L_{name}_end"
    common_head(a, 512, end)
    a(f"s_load_dwordx2 s[{S_P0 + 2}:{S_P0 + 3}], s[0:1], {KARG['ws']}")
    if first:
        a(f"s_load_dwordx2 s[{S_P0}:{S_P0 + 1}], s[0:1], {KARG['x']}")
    else:
        a(f"s_load_dwordx4 s[{S_P0 + 4}:{S_P0 + 7}], s[0:1], {KARG['b2']}")
    vL, vT = 1, 2
    a(f"v_lshrrev_b32 v{vT}, 6, v0")
    a(f"v_and_b32 v{vL}, 63, v0")
    a("s_nop 0")
    a(f"v_readfirstlane_b32 s{S_WAVE}, v{vT}")
    a("s_nop 3")
    a(f"s_lshl_b32 s{S_T0}, s2, 2")
    a(f"s_add_u32 s{S_T0}, s{S_T0}, s{S_WAVE}")
    a(f"s_mul_i32 s{S_T1}, s{S_T0}, 2304")
    a(f"s_mul_i32 s{S_T2}, s{S_T0}, 1152")
    a(f"s_lshr_b32 s38, s{S_T0}, 4")
    a(f"s_mul_i32 s38, s38, 18432")
    a(f"s_and_b32 s39, s{S_T0}, 15")
    a(f"s_lshl_b32 s39, s39, 4")
    a(f"s_add_u32 s38, s38, s39")
    a("s_waitcnt lgkmcnt(0)")
    srd_from(a, S_A, S_P0 + 2, part_off, 4 * 2048 * 2304)
    if first:
        srd_from(a, S_X, S_P0, 0, 2048 * 1152)
        srd_from(a, S_O, S_P0 + 2, WS_H, 2048 * 1152)
        srd_from(a, S_Y, S_P0 + 2, WS_HN, 2048 * 1152)
    else:
        srd_from(a, S_X, S_P0 + 2, WS_H, 2048 * 1152)
        srd_from(a, S_O, S_P0 + 6, 0, 2048 * 1152)
        srd_from(a, S_Y, S_P0 + 4, 0, 1152)
    vo4, vo2, vo3 = 4, 5, 6
    a(f"v_lshlrev_b32 v{vo4}, 6, v{vL}")
    a(f"v_lshlrev_b32 v{vo2}, 5, v{vL}")
    P = 8
    X = 72
    B = 80
    V = 88
    TM = 104
    mask = (1 << 36) - 1
    set_exec(a, mask)
    for s in range(4):
        if s:
            a(f"s_add_u32 s{S_T1}, s{S_T1}, {2048 * 2304}")
        for j in range(4):
            a(f"buffer_load_dwordx4 {vr(P + s * 16 + j * 4, 4)}, v{vo4}, s[{S_A}:{S_A + 3}], s{S_T1} offen offset:{j * 16}")
    for j in range(2):
        a(f"buffer_load_dwordx4 {vr(X + 4 * j, 4)}, v{vo2}, s[{S_X}:{S_X + 3}], s{S_T2} offen offset:{j * 16}")
    if not first:
        for j in range(2):
            a(f"buffer_load_dwordx4 {vr(B + 4 * j, 4)}, v{vo2}, s[{S_Y}:{S_Y + 3}], 0 offen offset:{j * 16}")
    a(f"v_lshrrev_b32 v{vo3}, 1, v{vL}")
    a(f"v_lshlrev_b32 v{vo3}, 10, v{vo3}")
    a(f"v_and_b32 v{TM}, 1, v{vL}")
    a(f"v_lshl_add_u32 v{vo3}, v{TM}, 9, v{vo3}")
    a("s_waitcnt vmcnt(0)")
    for i in range(16):
        a(f"v_add_f32 v{P + i}, v{P + i}, v{P + 16 + i}")
        a(f"v_add_f32 v{P + 32 + i}, v{P + 32 + i}, v{P + 48 + i}")
    for i in range(16):
        a(f"v_add_f32 v{P + i}, v{P + i}, v{P + 32 + i}")
    for i in range(8):
        s0, s1 = P + 2 * i, P + 2 * i + 1
        a(f"v_cvt_pk_bf16_f32 v{TM}, v{s0}, v{s1}")
        a(f"v_lshlrev_b32 v{s0}, 16, v{TM}")
        a(f"v_and_b32 v{s1}, 0xffff0000, v{TM}")
        if not first:
            a(f"v_lshlrev_b32 v{TM}, 16, v{B + i}")
            a(f"v_and_b32 v{TM + 1}, 0xffff0000, v{B + i}")
            a(f"v_add_f32 v{s0}, v{s0}, v{TM}")
            a(f"v_add_f32 v{s1}, v{s1}, v{TM + 1}")
            a(f"v_cvt_pk_bf16_f32 v{TM}, v{s0}, v{s1}")
            a(f"v_lshlrev_b32 v{s0}, 16, v{TM}")
            a(f"v_and_b32 v{s1}, 0xffff0000, v{TM}")
        a(f"v_lshlrev_b32 v{TM}, 16, v{X + i}")
        a(f"v_and_b32 v{TM + 1}, 0xffff0000, v{X + i}")
        a(f"v_add_f32 v{s0}, v{s0}, v{TM}")
        a(f"v_add_f32 v{s1}, v{s1}, v{TM + 1}")
        a(f"v_cvt_pk_bf16_f32 v{X + i}, v{s0}, v{s1}")
        if first:
            a(f"v_lshlrev_b32 v{V + 2 * i}, 16, v{X + i}")
            a(f"v_and_b32 v{V + 2 * i + 1}, 0xffff0000, v{X + i}")
    for j in range(2):
        a(f"buffer_store_dwordx4 {vr(X + 4 * j, 4)}, v{vo2}, s[{S_O}:{S_O + 3}], s{S_T2} offen offset:{j * 16}")
    a("s_mov_b64 exec, -1")
    if first:
        emit_ln(a, [V + i for i in range(16)], mask, TM, [B + i for i in range(8)])
        set_exec(a, mask)
        a(f"buffer_store_dwordx4 {vr(B, 4)}, v{vo3}, s[{S_Y}:{S_Y + 3}], s38 offen")
        a(f"buffer_store_dwordx4 {vr(B + 4, 4)}, v{vo3}, s[{S_Y}:{S_Y + 3}], s38 offen offset:256")
    a.label(end)
    a("s_endpgm")
    a.end_kernel(name, 112)
    return (name, 512, 256, 0)
```

```python
import sys
from asmlib import *
from layout import *
import gemm
import gemm2

NAME = "sequential_preLN__compressed_kv_cla__dense_activation_squared_relu__prompt"
HEAD = open(f"cdna_kernels/{NAME}.s.ref").read().split("; Override launch")[0]

def build(stages):
    a = Asm()
    launches = []
    if "kv" in stages: launches.append(gemm.gen_kv(a))
    if "attn" in stages:
        import attn
        launches.append(attn.gen_attn(a))
    if "oproj" in stages: launches.append(gemm2.gen_splitk2(a, "oproj_kernel", WS_CTX, 131072, "wo", 1024, False, WS_P1, 2))
    if "red1" in stages: launches.append(gemm2.gen_reduce2(a, "red1_kernel", WS_P1, True))
    if "up" in stages: launches.append(gemm2.gen_up2(a))
    if "down" in stages: launches.append(gemm2.gen_splitk2(a, "down_kernel", WS_ACT, 147456, "w2", 1152, True, WS_P2, 5))
    if "red2" in stages: launches.append(gemm2.gen_reduce2(a, "red2_kernel", WS_P2, False))
    out = [HEAD.rstrip()]
    for name, grid, block, lds in launches:
        out.append(f"; @launch kernel={name} grid=({grid},1,1) block=({block},1,1) lds={lds}")
    out.append('.amdgcn_target "amdgcn-amd-amdhsa--gfx950"')
    out.append(".text")
    out += a.L
    out += a.descriptors()
    txt = "\n".join(out) + "\n"
    import os, re
    stf = os.environ.get("STF", "sc0 sc1")
    if stf:
        parts = re.split(r"(?m)^(?=\.globl )", txt)
        skip = os.environ.get("STFSKIP", "red1,red2").split(",")
        for i, p in enumerate(parts):
            nm = p.split("\n")[0]
            if p.startswith(".globl") and not any(k and k in nm for k in skip):
                parts[i] = re.sub(r"(buffer_store_dwordx[24] [^\n]*)", lambda m: m.group(1) + " " + stf, p)
        txt = "".join(parts)
    return txt

if __name__ == "__main__":
    stages = sys.argv[2].split(",") if len(sys.argv) > 2 else ["kv", "attn", "oproj", "red1", "up", "down", "red2"]
    dst = sys.argv[1] if len(sys.argv) > 1 else f"cdna_kernels/{NAME}.s"
    open(dst, "w").write(build(stages))
    print("wrote", dst)
```

```python
from asmlib import *
from layout import *
from gemm import (S_A, S_W, S_O, S_X, S_Y, S_WAVE, S_WM, S_WN, S_GK, S_M0, S_N0, S_SPLIT, S_OFFA, S_OFFW, S_MA, S_MW,
                  S_T0, S_T1, S_T2, S_T3, S_P0, emit_ln, common_head)

WST = 64 * 288
import os
NOMFMA = os.environ.get('NOMFMA') == '1'
NOW = os.environ.get('NOW') == '1'
NOA = os.environ.get('NOA') == '1'
ROT2 = int(os.environ.get('ROT2', '0'))
NS_S = int(os.environ.get('NS_S', '4'))
PA_S = int(os.environ.get('PA_S', '4'))
NS_U = int(os.environ.get('NS_U', '3'))
PA_U = int(os.environ.get('PA_U', '4'))
UPMAP = int(os.environ.get('UPMAP', '0'))
LINW = os.environ.get('LINW') == '1'
S_KA, S_KWS = 54, 55


class VM:
    def __init__(self):
        self.ops = []

    def add(self, tag):
        self.ops.append(tag)

    def need(self, tags):
        last = max((i for i, t in enumerate(self.ops) if t in tags), default=-1)
        return len(self.ops) - 1 - last


class Gemm2:
    def __init__(self, a, tag, BM, GK, KLEN, mstride, ldw, NS, PA, w_perm):
        self.a, self.tag = a, tag
        self.BM, self.GK = BM, GK
        self.GM = 8 // GK
        assert BM == self.GM * 32
        self.KSW = 2 // GK
        self.NST = KLEN // 64
        self.NK = self.NST * self.KSW
        self.mstride, self.ldw, self.NS, self.PA, self.w_perm = mstride, ldw, NS, PA, w_perm
        self.TM, self.TN = 2, 9
        self.LDS = NS * WST
        self.vm = VM()

    def alloc(self, va):
        self.vL = va.get()
        self.vT = va.get(10)
        self.vA = [va.get() for _ in range(2)]
        self.vW_off = [va.get() for _ in range(3)]
        self.nb = (self.LDS + 65535) // 65536
        self.vW_rd = [va.get() for _ in range(self.nb)]
        self.fa = [[va.get(4, 4) for _ in range(2)] for _ in range(self.PA + 1)]
        self.fw = [[va.get(4, 4) for _ in range(9)] for _ in range(2)]
        self.acc = [[va.get(4, 4) for _ in range(2)] for _ in range(9)]

    def wave_ids(self):
        a = self.a
        a(f"v_lshrrev_b32 v{self.vT}, 6, v0")
        a(f"v_and_b32 v{self.vL}, 63, v0")
        a("s_nop 0")
        a(f"v_readfirstlane_b32 s{S_WAVE}, v{self.vT}")
        a("s_nop 3")
        gm = self.GM.bit_length() - 1
        a(f"s_and_b32 s{S_WM}, s{S_WAVE}, {self.GM - 1}")
        a(f"s_lshr_b32 s{S_GK}, s{S_WAVE}, {gm}")

    def setup_dma(self):
        a = self.a
        L, T = self.vL, self.vT
        a(f"s_lshr_b32 s{S_T0}, s{S_M0}, 4")
        a(f"s_lshl_b32 s{S_T1}, s{S_WM}, 1")
        a(f"s_add_u32 s{S_T0}, s{S_T0}, s{S_T1}")
        a(f"s_mul_i32 s{S_T0}, s{S_T0}, {self.mstride}")
        a(f"s_add_u32 s{S_OFFA}, s{S_OFFA}, s{S_T0}")
        if self.GK == 2:
            a(f"s_lshl_b32 s{S_T0}, s{S_GK}, 10")
            a(f"s_add_u32 s{S_OFFA}, s{S_OFFA}, s{S_T0}")
        a(f"v_lshlrev_b32 v{self.vA[0]}, 4, v{L}")
        a(f"v_add_u32 v{self.vA[1]}, 0x{self.mstride:x}, v{self.vA[0]}")
        a(f"s_lshl_b32 s{S_T2}, s{S_N0}, 1")
        a(f"s_mov_b32 s{S_T1}, {self.ldw}")
        a(f"s_lshl_b32 s{S_T0}, s{S_WAVE}, 3")
        for i in range(3):
            a(f"v_add_u32 v{T}, {64 * i}, v{L}")
            a(f"v_mul_u32_u24 v{T + 1}, 57, v{T}")
            a(f"v_lshrrev_b32 v{T + 1}, 10, v{T + 1}")
            a(f"v_mul_u32_u24 v{T + 2}, 18, v{T + 1}")
            a(f"v_sub_u32 v{T + 2}, v{T}, v{T + 2}")
            a(f"v_add_u32 v{T + 1}, s{S_T0}, v{T + 1}")
            if self.w_perm:
                a(f"v_bfe_u32 v{T + 3}, v{T + 1}, 2, 1")
                a(f"v_bfe_u32 v{T + 4}, v{T + 1}, 3, 1")
                a(f"v_and_b32 v{T + 1}, 0xfffffff3, v{T + 1}")
                a(f"v_lshl_or_b32 v{T + 1}, v{T + 3}, 3, v{T + 1}")
                a(f"v_lshl_or_b32 v{T + 1}, v{T + 4}, 2, v{T + 1}")
            a(f"v_mul_lo_u32 v{T + 1}, v{T + 1}, s{S_T1}")
            a(f"v_lshl_add_u32 v{T + 1}, v{T + 2}, 4, v{T + 1}")
            a(f"v_add_u32 v{self.vW_off[i]}, s{S_T2}, v{T + 1}")
        a(f"s_mul_i32 s{S_MW}, s{S_WAVE}, {144 * 16}")
        if LINW:
            a(f"s_mul_i32 s{S_T0}, s{S_N0}, {self.NST * 128}")
            a(f"s_add_u32 s{S_T0}, s{S_T0}, s{S_MW}")
            for i in range(3):
                a(f"v_lshlrev_b32 v{self.vW_off[i]}, 4, v{L}")
                a(f"v_add_u32 v{self.vW_off[i]}, s{S_T0}, v{self.vW_off[i]}")
                a(f"v_add_u32 v{self.vW_off[i]}, {1024 * i}, v{self.vW_off[i]}")

    def rotate(self, cm, cn):
        a = self.a
        if not ROT2:
            return
        a(f"s_lshr_b32 s{S_T0}, s2, 3")
        a(f"s_and_b32 s{S_T1}, s{S_T0}, 3")
        a(f"s_lshr_b32 s{S_T0}, s{S_T0}, 2")
        a(f"s_mul_i32 s{S_T0}, s{S_T0}, {cm}")
        a(f"s_mul_i32 s{S_T1}, s{S_T1}, {cn}")
        a(f"s_add_u32 s{S_KWS}, s{S_T0}, s{S_T1}")
        a(f"s_cmp_ge_u32 s{S_KWS}, {self.NST}")
        a(f"s_cselect_b32 s{S_T0}, {self.NST}, 0")
        a(f"s_sub_u32 s{S_KWS}, s{S_KWS}, s{S_T0}")
        a(f"s_mul_i32 s{S_T0}, s{S_KWS}, 2048")
        a(f"s_add_u32 s{S_OFFA}, s{S_OFFA}, s{S_T0}")
        a(f"s_mul_i32 s{S_T0}, s{S_KWS}, 0x{64 * self.ldw:x}")
        a(f"s_add_u32 s{S_OFFW}, s{S_OFFW}, s{S_T0}")
        a(f"s_mul_i32 s{S_KA}, s{S_KWS}, {self.KSW}")

    def setup_rd(self):
        a = self.a
        L, T = self.vL, self.vT
        w0 = self.vW_rd[0]
        a(f"v_lshrrev_b32 v{T}, 4, v{L}")
        a(f"v_bfe_u32 v{T + 1}, v{L}, 2, 2")
        a(f"v_and_b32 v{T + 2}, 3, v{L}")
        a(f"v_lshrrev_b32 v{T + 3}, 1, v{T}")
        a(f"v_lshl_add_u32 v{T + 1}, v{T + 3}, 4, v{T + 1}")
        a(f"v_and_b32 v{T + 3}, 1, v{T}")
        a(f"v_lshl_add_u32 v{T + 1}, v{T + 3}, 2, v{T + 1}")
        a(f"v_mul_u32_u24 v{T + 1}, 288, v{T + 1}")
        a(f"v_lshl_add_u32 v{w0}, v{T + 2}, 3, v{T + 1}")
        if self.GK == 2:
            a(f"s_mul_i32 s{S_T1}, s{S_GK}, {32 * 288}")
            a(f"v_add_u32 v{w0}, s{S_T1}, v{w0}")
        for k in range(1, self.nb):
            a(f"v_add_u32 v{self.vW_rd[k]}, 0x{65536 * k:x}, v{w0}")
        for row in self.acc:
            for r in row:
                for j in range(4):
                    a(f"v_mov_b32 v{r + j}, 0")

    def w_dma(self, s):
        wb = (s % self.NS) * WST
        it = []
        for i in range(3):
            g = [f"s_add_u32 m0, s{S_MW}, 0x{wb + i * 1024:x}"]
            if i == 2:
                g += ["s_mov_b64 exec, 0xffff",
                      f"buffer_load_dwordx4 v{self.vW_off[i]}, s[{S_W}:{S_W + 3}], s{S_OFFW} offen lds",
                      "s_mov_b64 exec, -1", f"s_add_u32 s{S_OFFW}, s{S_OFFW}, 0x{(18432 if LINW else 64 * self.ldw):x}"]
                if ROT2:
                    g += [f"s_add_u32 s{S_KWS}, s{S_KWS}, 1", f"s_cmp_eq_u32 s{S_KWS}, {self.NST}",
                          f"s_cselect_b32 s{S_T3}, 0x{self.NST * 64 * self.ldw:x}, 0",
                          f"s_cselect_b32 s{S_KWS}, 0, s{S_KWS}", f"s_sub_u32 s{S_OFFW}, s{S_OFFW}, s{S_T3}"]
            else:
                g += ["s_nop 0", f"buffer_load_dwordx4 v{self.vW_off[i]}, s[{S_W}:{S_W + 3}], s{S_OFFW} offen lds"]
            if NOW:
                g = [x for x in g if not x.startswith("buffer_load")] + ["s_nop 0"]
            it.append((g, ("W", s)))
        return it

    def a_load(self, g):
        f = self.fa[g % (self.PA + 1)]
        step = 1024 * self.GK
        if NOA:
            return [(["s_nop 0"], ("A", g)), (["s_nop 0"], ("A", g))]
        return [([f"buffer_load_dwordx4 {vr(f[0], 4)}, v{self.vA[0]}, s[{S_A}:{S_A + 3}], s{S_OFFA} offen"], ("A", g)),
                ([f"buffer_load_dwordx4 {vr(f[1], 4)}, v{self.vA[1]}, s[{S_A}:{S_A + 3}], s{S_OFFA} offen",
                  f"s_add_u32 s{S_OFFA}, s{S_OFFA}, {step}"] + ([] if not ROT2 else [
                      f"s_add_u32 s{S_KA}, s{S_KA}, 1", f"s_cmp_eq_u32 s{S_KA}, {self.NK}",
                      f"s_cselect_b32 s{S_T2}, 0x{self.NK * step:x}, 0",
                      f"s_cselect_b32 s{S_KA}, 0, s{S_KA}", f"s_sub_u32 s{S_OFFA}, s{S_OFFA}, s{S_T2}"]), ("A", g))]

    def emit_vm(self, items):
        for g, tag in items:
            self.a.many(g)
            self.vm.add(tag)

    def prologue(self):
        g = 0
        for s in range(self.NS):
            for _ in range(self.KSW):
                if g < self.PA:
                    self.emit_vm(self.a_load(g))
                    g += 1
            self.emit_vm(self.w_dma(s))
        while g < self.PA:
            self.emit_vm(self.a_load(g))
            g += 1

    def frag_reads(self, g, fb):
        s, ks = g // self.KSW, g % self.KSW
        base = (s % self.NS) * WST + (ks * 32 * 288 if self.GK == 1 else 0)
        out = []
        for tn in range(9):
            for h in range(2):
                o = base + tn * 32 + h * 8 * 288
                out.append(f"ds_read_b64_tr_b16 {vr(self.fw[fb][tn] + 2 * h, 2)}, v{self.vW_rd[o >> 16]} offset:{o & 0xffff}")
        return out

    def mainloop(self):
        a = self.a
        stamp(a, 1)
        a(f"s_waitcnt vmcnt({self.vm.need({('W', 0)})})")
        a("s_barrier")
        stamp(a, 2)
        a.many(self.frag_reads(0, 0))
        for g in range(self.NK):
            s, ks = g // self.KSW, g % self.KSW
            last = ks == self.KSW - 1
            par = g & 1
            need = {("A", g)}
            if last and s + 1 < self.NST:
                need.add(("W", s + 1))
            a(f"s_waitcnt vmcnt({self.vm.need(need)}) lgkmcnt(0)")
            if last and s + 1 < self.NST:
                a("s_barrier")
            vmi = []
            if g + self.PA < self.NK:
                vmi += self.a_load(g + self.PA)
            if last and s + self.NS < self.NST:
                vmi += self.w_dma(s + self.NS)
            reads = self.frag_reads(g + 1, par ^ 1) if g + 1 < self.NK else []
            fill = []
            step = max(1, len(reads) // max(1, len(vmi)))
            vi = 0
            for i, r in enumerate(reads):
                fill.append(r)
                if i % step == step - 1 and vi < len(vmi):
                    fill.append(vmi[vi][0]); self.vm.add(vmi[vi][1]); vi += 1
            for k in range(vi, len(vmi)):
                fill.append(vmi[k][0]); self.vm.add(vmi[k][1])
            f = self.fa[g % (self.PA + 1)]
            mf = []
            for tn in range(9):
                for tm in range(2):
                    c = vr(self.acc[tn][tm], 4)
                    mf.append(f"v_mfma_f32_16x16x32_bf16 {c}, {vr(self.fw[par][tn], 4)}, {vr(f[tm], 4)}, {c}")
            if NOMFMA:
                mf = ["s_nop 0"] * len(mf)
            interleave(a, mf, fill)
        a("s_nop 15")
        stamp(a, 3)


def gen_splitk2(a, name, act_off, mstride, wkey, klen, w_perm, out_off, kidx, fuse=None):
    a.begin_kernel(name)
    end = f"L_{name}_end"
    common_head(a, 256, end)
    g = Gemm2(a, name[:4], 128, 2, klen, mstride, 1152, NS_S, PA_S, w_perm)
    va = VAlloc(1)
    g.alloc(va)
    a(f"s_load_dwordx2 s[{S_P0}:{S_P0 + 1}], s[0:1], {KARG[wkey]}")
    a(f"s_load_dwordx2 s[{S_P0 + 2}:{S_P0 + 3}], s[0:1], {KARG['ws']}")
    g.wave_ids()
    a(f"s_and_b32 s{S_SPLIT}, s2, 3")
    a(f"s_bfe_u32 s{S_T0}, s2, 0x10002")
    a(f"s_lshr_b32 s{S_T1}, s2, 3")
    a(f"s_and_b32 s{S_T2}, s{S_T1}, 3")
    a(f"s_mul_i32 s{S_N0}, s{S_T2}, 144")
    a(f"s_lshr_b32 s{S_T1}, s{S_T1}, 2")
    a(f"s_lshl_b32 s{S_T0}, s{S_T0}, 3")
    a(f"s_add_u32 s{S_T1}, s{S_T1}, s{S_T0}")
    a(f"s_lshl_b32 s{S_M0}, s{S_T1}, 7")
    a(f"s_mul_i32 s{S_OFFA}, s{S_SPLIT}, {klen // 32 * 1024}")
    a(f"s_mul_i32 s{S_OFFW}, s{S_SPLIT}, {klen * 1152}")
    a("s_waitcnt lgkmcnt(0)")
    srd_from(a, S_A, S_P0 + 2, act_off, 128 * mstride)
    srd_from(a, S_W, S_P0, 0, klen * 4 * 1152)
    srd_from(a, S_O, S_P0 + 2, out_off, 4 * 2048 * 2304)
    g.rotate(2, 5)
    g.setup_dma()
    g.prologue()
    g.setup_rd()
    g.mainloop()
    T, L = g.vT, g.vL
    PITCH, REG = 592, 128 * 592
    a("s_barrier")
    a(f"s_lshl_b32 s{S_T0}, s{S_WM}, 5")
    a(f"v_and_b32 v{T}, 15, v{L}")
    a(f"v_add_u32 v{T}, s{S_T0}, v{T}")
    a(f"v_mul_u32_u24 v{T}, {PITCH}, v{T}")
    a(f"v_lshrrev_b32 v{T + 1}, 4, v{L}")
    a(f"v_lshl_add_u32 v{T}, v{T + 1}, 4, v{T}")
    a(f"s_mul_i32 s{S_T0}, s{S_GK}, {REG}")
    a(f"v_add_u32 v{T}, s{S_T0}, v{T}")
    for tn in range(9):
        for tm in range(2):
            a(f"ds_write_b128 v{T}, {vr(g.acc[tn][tm], 4)} offset:{tm * 16 * PITCH + tn * 64}")
    a(f"s_mul_i32 s{S_T0}, s{S_SPLIT}, {2048 * 2304}")
    a(f"s_lshl_b32 s{S_T2}, s{S_WAVE}, 4")
    a(f"s_add_u32 s{S_T1}, s{S_M0}, s{S_T2}")
    a(f"s_mul_i32 s{S_T1}, s{S_T1}, 2304")
    a(f"s_add_u32 s{S_T0}, s{S_T0}, s{S_T1}")
    a(f"s_lshl_b32 s{S_T1}, s{S_N0}, 2")
    a(f"s_add_u32 s{S_T0}, s{S_T0}, s{S_T1}")
    a(f"s_mul_i32 s{S_T2}, s{S_T2}, {PITCH}")
    la = [g.fw[1][i] for i in range(9)]
    for i in range(9):
        r = la[i]
        a(f"v_add_u32 v{T + 1}, {64 * i}, v{L}")
        a(f"v_mul_u32_u24 v{T + 2}, 1821, v{T + 1}")
        a(f"v_lshrrev_b32 v{T + 2}, 16, v{T + 2}")
        a(f"v_mul_u32_u24 v{T + 3}, 36, v{T + 2}")
        a(f"v_sub_u32 v{T + 3}, v{T + 1}, v{T + 3}")
        a(f"v_lshlrev_b32 v{T + 3}, 4, v{T + 3}")
        a(f"v_mul_u32_u24 v{r}, {PITCH}, v{T + 2}")
        a(f"v_add3_u32 v{r}, v{r}, v{T + 3}, s{S_T2}")
        a(f"v_add_u32 v{r + 2}, 0x{REG:x}, v{r}")
        a(f"v_mul_u32_u24 v{r + 1}, 2304, v{T + 2}")
        a(f"v_add_u32 v{r + 1}, v{r + 1}, v{T + 3}")
    a("s_waitcnt lgkmcnt(0)")
    a("s_barrier")
    for i in range(9):
        a(f"ds_read_b128 {vr(g.acc[i][0], 4)}, v{la[i]}")
        a(f"ds_read_b128 {vr(g.acc[i][1], 4)}, v{la[i] + 2}")
    for i in range(9):
        a(f"s_waitcnt lgkmcnt({min(14, 16 - 2 * i)})")
        c, d = g.acc[i][0], g.acc[i][1]
        for q in range(4):
            a(f"v_add_f32 v{c + q}, v{c + q}, v{d + q}")
        a(f"buffer_store_dwordx4 {vr(c, 4)}, v{la[i] + 1}, s[{S_O}:{S_O + 3}], s{S_T0} offen")
    stamp(a, 4)
    if fuse is not None:
        a(f"s_lshr_b32 s58, s{S_M0}, 7")
        a(f"s_bfe_u32 s59, s2, 0x20003")
        a(f"s_lshl_b32 s{S_T3}, s{S_SPLIT}, 2")
        a(f"s_add_u32 s59, s59, s{S_T3}")
        team_barrier(a, name, 58, 0, 16, T)
        stamp(a, 5)
        a(f"s_lshl_b32 s{S_T0}, s59, 3")
        a(f"s_add_u32 s{S_T0}, s{S_T0}, s{S_M0}")
        a(f"s_add_u32 s{S_T0}, s{S_T0}, s{S_WAVE}")
        emit_reduce_row(a, out_off, fuse == "first", " sc1")
        a("s_mov_b64 exec, -1")
        stamp(a, 6)
        stamp_dump(a, 7, kidx, T, S_WAVE)
    else:
        stamp_dump(a, 5, kidx, T, S_WAVE)
    a.label(end)
    a("s_endpgm")
    a.end_kernel(name, va.hi)
    return (name, 256, 512, max(g.LDS, 2 * REG))


def gen_up2(a, kidx=4):
    name = "mlp_up_kernel"
    a.begin_kernel(name)
    end = f"L_{name}_end"
    common_head(a, 256, end)
    g = Gemm2(a, "up", 256, 1, 576, 18432, 9216, NS_U, PA_U, True)
    va = VAlloc(1)
    g.alloc(va)
    bias = [va.get(2, 2) for _ in range(9)]
    a(f"s_load_dwordx4 s[{S_P0 + 4}:{S_P0 + 7}], s[0:1], {KARG['w1']}")
    a(f"s_load_dwordx2 s[{S_P0 + 2}:{S_P0 + 3}], s[0:1], {KARG['ws']}")
    g.wave_ids()
    if UPMAP == 0:
        a(f"s_and_b32 s{S_T0}, s2, 7")
        a(f"s_lshr_b32 s{S_T1}, s2, 3")
        a(f"s_and_b32 s{S_T2}, s{S_T1}, 3")
        a(f"s_lshl_b32 s{S_T0}, s{S_T0}, 2")
        a(f"s_add_u32 s{S_SPLIT}, s{S_T0}, s{S_T2}")
        a(f"s_lshr_b32 s{S_T1}, s{S_T1}, 2")
    else:
        a(f"s_bfe_u32 s{S_T0}, s2, 0x20001")
        a(f"s_lshr_b32 s{S_T1}, s2, 3")
        a(f"s_and_b32 s{S_T2}, s{S_T1}, 7")
        a(f"s_lshl_b32 s{S_T0}, s{S_T0}, 3")
        a(f"s_add_u32 s{S_SPLIT}, s{S_T0}, s{S_T2}")
        a(f"s_lshr_b32 s{S_T1}, s{S_T1}, 3")
        a(f"s_and_b32 s{S_T2}, s2, 1")
        a(f"s_lshl_b32 s{S_T2}, s{S_T2}, 2")
        a(f"s_add_u32 s{S_T1}, s{S_T1}, s{S_T2}")
    a(f"s_lshl_b32 s{S_M0}, s{S_T1}, 8")
    a(f"s_mul_i32 s{S_N0}, s{S_SPLIT}, 144")
    a(f"s_mov_b32 s{S_OFFA}, 0")
    a(f"s_mov_b32 s{S_OFFW}, 0")
    a("s_waitcnt lgkmcnt(0)")
    srd_from(a, S_A, S_P0 + 2, WS_HN, 2048 * 1152)
    srd_from(a, S_W, S_P0 + 4, 0, 576 * 9216)
    srd_from(a, S_O, S_P0 + 2, WS_ACT, 2048 * 9216)
    srd_from(a, S_X, S_P0 + 6, 0, 9216)
    T, L = g.vT, g.vL
    g.rotate(1, 2)
    g.setup_dma()
    g.prologue()
    a(f"v_lshrrev_b32 v{T}, 4, v{L}")
    a(f"v_lshlrev_b32 v{T}, 3, v{T}")
    a(f"s_lshl_b32 s{S_T0}, s{S_N0}, 1")
    for tn in range(9):
        a(f"buffer_load_dwordx2 {vr(bias[tn], 2)}, v{T}, s[{S_X}:{S_X + 3}], s{S_T0} offen offset:{tn * 32}")
        g.vm.add(("B", tn))
    g.setup_rd()
    g.mainloop()
    PITCH = 304
    a("s_waitcnt vmcnt(0)")
    a("s_barrier")
    a(f"s_mul_i32 s{S_T2}, s{S_WAVE}, {32 * PITCH}")
    a(f"v_and_b32 v{T}, 15, v{L}")
    a(f"v_mul_u32_u24 v{T}, {PITCH}, v{T}")
    a(f"v_lshrrev_b32 v{T + 1}, 4, v{L}")
    a(f"v_lshl_add_u32 v{T + 2}, v{T + 1}, 3, v{T}")
    a(f"v_add_u32 v{T + 2}, s{S_T2}, v{T + 2}")
    bf = g.fw[0][0]
    k = 0
    for tn in range(9):
        b = bias[tn]
        a(f"v_lshlrev_b32 v{bf}, 16, v{b}")
        a(f"v_and_b32 v{bf + 1}, 0xffff0000, v{b}")
        a(f"v_lshlrev_b32 v{bf + 2}, 16, v{b + 1}")
        a(f"v_and_b32 v{bf + 3}, 0xffff0000, v{b + 1}")
        for tm in range(2):
            c = g.acc[tn][tm]
            for q in range(4):
                a(f"v_add_f32 v{c + q}, v{c + q}, v{bf + q}")
            for q in range(4):
                a(f"v_max_f32 v{c + q}, 0, v{c + q}")
            for q in range(4):
                a(f"v_mul_f32 v{c + q}, v{c + q}, v{c + q}")
            a(f"v_cvt_pk_bf16_f32 v{c}, v{c}, v{c + 1}")
            a(f"v_cvt_pk_bf16_f32 v{c + 1}, v{c + 2}, v{c + 3}")
            a(f"ds_write_b64 v{T + 2}, {vr(c, 2)} offset:{tm * 16 * PITCH + tn * 32}")
    a(f"s_lshr_b32 s{S_T0}, s{S_M0}, 4")
    a(f"s_lshl_b32 s{S_T1}, s{S_WM}, 1")
    a(f"s_add_u32 s{S_T0}, s{S_T0}, s{S_T1}")
    a(f"s_mul_i32 s{S_T0}, s{S_T0}, 147456")
    a(f"s_mul_i32 s{S_T1}, s{S_SPLIT}, 18")
    a(f"v_and_b32 v{T + 3}, 15, v{L}")
    a(f"v_lshlrev_b32 v{T + 3}, 4, v{T + 3}")
    a(f"v_add_u32 v{T}, s{S_T2}, v{T}")
    la = [g.fw[1][i] for i in range(9)]
    a(f"s_mov_b32 s{S_T3}, 147456")
    for i in range(9):
        r = la[i]
        a(f"v_add_u32 v{T + 4}, {4 * i}, v{T + 1}")
        a(f"v_mul_u32_u24 v{T + 5}, 57, v{T + 4}")
        a(f"v_lshrrev_b32 v{T + 5}, 10, v{T + 5}")
        a(f"v_mul_u32_u24 v{T + 6}, 18, v{T + 5}")
        a(f"v_sub_u32 v{T + 6}, v{T + 4}, v{T + 6}")
        a(f"v_mul_u32_u24 v{r}, {16 * PITCH}, v{T + 5}")
        a(f"v_lshl_add_u32 v{r}, v{T + 6}, 4, v{r}")
        a(f"v_add_u32 v{r}, v{r}, v{T}")
        a(f"v_add_u32 v{T + 6}, s{S_T1}, v{T + 6}")
        a(f"v_lshrrev_b32 v{T + 7}, 2, v{T + 6}")
        a(f"v_lshl_add_u32 v{T + 7}, v{T + 7}, 10, v{T + 3}")
        a(f"v_and_b32 v{T + 6}, 3, v{T + 6}")
        a(f"v_lshl_add_u32 v{T + 7}, v{T + 6}, 8, v{T + 7}")
        a(f"v_mul_lo_u32 v{T + 5}, v{T + 5}, s{S_T3}")
        a(f"v_add_u32 v{r + 1}, v{T + 7}, v{T + 5}")
    a("s_waitcnt lgkmcnt(0)")
    for i in range(9):
        a(f"ds_read_b128 {vr(g.acc[i][0], 4)}, v{la[i]}")
    for i in range(9):
        a(f"s_waitcnt lgkmcnt({8 - i})")
        a(f"buffer_store_dwordx4 {vr(g.acc[i][0], 4)}, v{la[i] + 1}, s[{S_O}:{S_O + 3}], s{S_T0} offen")
    stamp(a, 4)
    stamp_dump(a, 5, kidx, T, S_WAVE)
    a.label(end)
    a("s_endpgm")
    a.end_kernel(name, va.hi)
    return (name, 256, 512, max(g.LDS, 8 * 32 * PITCH))


def emit_reduce_row(a, part_off, first, ldflag=""):
    a(f"s_load_dwordx2 s[{S_P0 + 2}:{S_P0 + 3}], s[0:1], {KARG['ws']}")
    if first:
        a(f"s_load_dwordx2 s[{S_P0}:{S_P0 + 1}], s[0:1], {KARG['x']}")
    else:
        a(f"s_load_dwordx4 s[{S_P0 + 4}:{S_P0 + 7}], s[0:1], {KARG['b2']}")
    vL = 1
    a(f"s_mul_i32 s{S_T1}, s{S_T0}, 2304")
    a(f"s_mul_i32 s{S_T2}, s{S_T0}, 1152")
    a(f"s_lshr_b32 s38, s{S_T0}, 4")
    a(f"s_mul_i32 s38, s38, 18432")
    a(f"s_and_b32 s39, s{S_T0}, 15")
    a(f"s_lshl_b32 s39, s39, 4")
    a(f"s_add_u32 s38, s38, s39")
    a("s_waitcnt lgkmcnt(0)")
    srd_from(a, S_A, S_P0 + 2, part_off, 4 * 2048 * 2304)
    if first:
        srd_from(a, S_X, S_P0, 0, 2048 * 1152)
        srd_from(a, S_O, S_P0 + 2, WS_H, 2048 * 1152)
        srd_from(a, S_Y, S_P0 + 2, WS_HN, 2048 * 1152)
    else:
        srd_from(a, S_X, S_P0 + 2, WS_H, 2048 * 1152)
        srd_from(a, S_O, S_P0 + 6, 0, 2048 * 1152)
        srd_from(a, S_Y, S_P0 + 4, 0, 1152)
    vo4, vo2, vo3 = 4, 5, 6
    a(f"v_lshlrev_b32 v{vo4}, 6, v{vL}")
    a(f"v_lshlrev_b32 v{vo2}, 5, v{vL}")
    P = 8
    X = 72
    B = 80
    V = 88
    TM = 104
    mask = (1 << 36) - 1
    set_exec(a, mask)
    for s in range(4):
        if s:
            a(f"s_add_u32 s{S_T1}, s{S_T1}, {2048 * 2304}")
        for j in range(4):
            a(f"buffer_load_dwordx4 {vr(P + s * 16 + j * 4, 4)}, v{vo4}, s[{S_A}:{S_A + 3}], s{S_T1} offen offset:{j * 16}{ldflag}")
    for j in range(2):
        a(f"buffer_load_dwordx4 {vr(X + 4 * j, 4)}, v{vo2}, s[{S_X}:{S_X + 3}], s{S_T2} offen offset:{j * 16}")
    if not first:
        for j in range(2):
            a(f"buffer_load_dwordx4 {vr(B + 4 * j, 4)}, v{vo2}, s[{S_Y}:{S_Y + 3}], 0 offen offset:{j * 16}")
    a(f"v_lshrrev_b32 v{vo3}, 1, v{vL}")
    a(f"v_lshlrev_b32 v{vo3}, 10, v{vo3}")
    a(f"v_and_b32 v{TM}, 1, v{vL}")
    a(f"v_lshl_add_u32 v{vo3}, v{TM}, 9, v{vo3}")
    a("s_waitcnt vmcnt(0)")
    for i in range(16):
        a(f"v_add_f32 v{P + i}, v{P + i}, v{P + 16 + i}")
        a(f"v_add_f32 v{P + 32 + i}, v{P + 32 + i}, v{P + 48 + i}")
    for i in range(16):
        a(f"v_add_f32 v{P + i}, v{P + i}, v{P + 32 + i}")
    for i in range(8):
        s0, s1 = P + 2 * i, P + 2 * i + 1
        a(f"v_cvt_pk_bf16_f32 v{TM}, v{s0}, v{s1}")
        a(f"v_lshlrev_b32 v{s0}, 16, v{TM}")
        a(f"v_and_b32 v{s1}, 0xffff0000, v{TM}")
        if not first:
            a(f"v_lshlrev_b32 v{TM}, 16, v{B + i}")
            a(f"v_and_b32 v{TM + 1}, 0xffff0000, v{B + i}")
            a(f"v_add_f32 v{s0}, v{s0}, v{TM}")
            a(f"v_add_f32 v{s1}, v{s1}, v{TM + 1}")
            a(f"v_cvt_pk_bf16_f32 v{TM}, v{s0}, v{s1}")
            a(f"v_lshlrev_b32 v{s0}, 16, v{TM}")
            a(f"v_and_b32 v{s1}, 0xffff0000, v{TM}")
        a(f"v_lshlrev_b32 v{TM}, 16, v{X + i}")
        a(f"v_and_b32 v{TM + 1}, 0xffff0000, v{X + i}")
        a(f"v_add_f32 v{s0}, v{s0}, v{TM}")
        a(f"v_add_f32 v{s1}, v{s1}, v{TM + 1}")
        a(f"v_cvt_pk_bf16_f32 v{X + i}, v{s0}, v{s1}")
        if first:
            a(f"v_lshlrev_b32 v{V + 2 * i}, 16, v{X + i}")
            a(f"v_and_b32 v{V + 2 * i + 1}, 0xffff0000, v{X + i}")
    for j in range(2):
        a(f"buffer_store_dwordx4 {vr(X + 4 * j, 4)}, v{vo2}, s[{S_O}:{S_O + 3}], s{S_T2} offen offset:{j * 16}")
    a("s_mov_b64 exec, -1")
    if first:
        emit_ln(a, [V + i for i in range(16)], mask, TM, [B + i for i in range(8)])
        set_exec(a, mask)
        a(f"buffer_store_dwordx4 {vr(B, 4)}, v{vo3}, s[{S_Y}:{S_Y + 3}], s38 offen")
        a(f"buffer_store_dwordx4 {vr(B + 4, 4)}, v{vo3}, s[{S_Y}:{S_Y + 3}], s38 offen offset:256")


def gen_reduce2(a, name, part_off, first):
    a.begin_kernel(name)
    end = f"L_{name}_end"
    RW = int(os.environ.get("RW", "4"))
    common_head(a, 2048 // RW, end)
    a(f"v_lshrrev_b32 v2, 6, v0")
    a(f"v_and_b32 v1, 63, v0")
    a("s_nop 0")
    a(f"v_readfirstlane_b32 s{S_WAVE}, v2")
    a("s_nop 3")
    a(f"s_mul_i32 s{S_T0}, s2, {RW}")
    a(f"s_add_u32 s{S_T0}, s{S_T0}, s{S_WAVE}")
    emit_reduce_row(a, part_off, first)
    a.label(end)
    a("s_endpgm")
    a.end_kernel(name, 112)
    return (name, 2048 // RW, 64 * RW, 0)


def team_barrier(a, tag, s_team, idx, target, vt):
    a(f"s_load_dwordx2 s[56:57], s[0:1], {KARG['dbg']}")
    a("s_waitcnt vmcnt(0) lgkmcnt(0)")
    a("s_barrier")
    skip = f"L_{tag}_tb{idx}_skip"
    loop = f"L_{tag}_tb{idx}_loop"
    okl = f"L_{tag}_tb{idx}_ok"
    a(f"s_cmp_lg_u32 s{S_WAVE}, 0")
    a(f"s_cbranch_scc1 {skip}")
    srd_from(a, S_X, 56, 0, 256)
    a(f"s_lshl_b32 s{S_T0}, s{s_team}, 4")
    a(f"s_add_u32 s{S_T0}, s{S_T0}, {4 * idx}")
    a(f"v_mov_b32 v{vt}, 0")
    a(f"v_mov_b32 v{vt + 1}, 1")
    a("s_mov_b64 exec, 1")
    a(f"buffer_atomic_add v{vt + 1}, v{vt}, s[{S_X}:{S_X + 3}], s{S_T0} offen")
    a(f"s_mov_b32 s{S_T1}, 0x40000")
    a.label(loop)
    a(f"buffer_load_dword v{vt + 1}, v{vt}, s[{S_X}:{S_X + 3}], s{S_T0} offen sc1")
    a("s_waitcnt vmcnt(0)")
    a(f"v_readfirstlane_b32 s{S_T2}, v{vt + 1}")
    a(f"s_sub_u32 s{S_T1}, s{S_T1}, 1")
    a(f"s_cmp_ge_u32 s{S_T2}, {target}")
    a(f"s_cbranch_scc1 {okl}")
    a("s_sleep 1")
    a(f"s_cmp_lg_u32 s{S_T1}, 0")
    a(f"s_cbranch_scc1 {loop}")
    a.label(okl)
    a("s_mov_b64 exec, -1")
    a("buffer_inv sc1")
    a("s_waitcnt vmcnt(0)")
    a.label(skip)
    a("s_barrier")
```

```python
import sys
from asmlib import *
from layout import *
import gemm
import gemm2

NAME = "sequential_preLN__compressed_kv_cla__dense_activation_squared_relu__prompt"
HEAD = open(f"cdna_kernels/{NAME}.s.ref").read().split("; Override launch")[0]

def build(stages):
    a = Asm()
    launches = []
    if "kv" in stages: launches.append(gemm.gen_kv(a))
    if "attn" in stages:
        import attn
        launches.append(attn.gen_attn(a))
    import os
    FUSE = os.environ.get("FUSE", "0") == "1"
    if "oproj" in stages: launches.append(gemm2.gen_splitk2(a, "oproj_kernel", WS_CTX, 131072, "wo", 1024, False, WS_P1, 2, "first" if FUSE else None))
    if "red1" in stages and not FUSE: launches.append(gemm2.gen_reduce2(a, "red1_kernel", WS_P1, True))
    if "up" in stages: launches.append(gemm2.gen_up2(a, 3 if FUSE else 4))
    if "down" in stages: launches.append(gemm2.gen_splitk2(a, "down_kernel", WS_ACT, 147456, "w2", 1152, True, WS_P2, 4 if FUSE else 5, "last" if FUSE else None))
    if "red2" in stages and not FUSE: launches.append(gemm2.gen_reduce2(a, "red2_kernel", WS_P2, False))
    out = [HEAD.rstrip()]
    for name, grid, block, lds in launches:
        out.append(f"; @launch kernel={name} grid=({grid},1,1) block=({block},1,1) lds={lds}")
    out.append('.amdgcn_target "amdgcn-amd-amdhsa--gfx950"')
    out.append(".text")
    out += a.L
    out.append("L_text_end:")
    out.append("    s_endpgm")
    out += a.descriptors()
    txt = "\n".join(out) + "\n"
    import os, re
    stf = os.environ.get("STF", "sc0 sc1")
    if stf:
        parts = re.split(r"(?m)^(?=\.globl )", txt)
        skip = os.environ.get("STFSKIP", "red1,red2").split(",")
        for i, p in enumerate(parts):
            nm = p.split("\n")[0]
            if p.startswith(".globl") and not any(k and k in nm for k in skip):
                parts[i] = re.sub(r"(buffer_store_dwordx[24] [^\n]*)", lambda m: m.group(1) + " " + stf, p)
        txt = "".join(parts)
    return txt

if __name__ == "__main__":
    stages = sys.argv[2].split(",") if len(sys.argv) > 2 else ["kv", "attn", "oproj", "red1", "up", "down", "red2"]
    dst = sys.argv[1] if len(sys.argv) > 1 else f"cdna_kernels/{NAME}.s"
    open(dst, "w").write(build(stages))
    print("wrote", dst)
```

```python
from asmlib import *
from layout import *

S_A, S_W, S_O, S_X, S_Y = 4, 8, 12, 16, 40
S_WAVE, S_WM, S_WN, S_GK, S_M0, S_N0, S_SPLIT = 20, 21, 22, 23, 24, 25, 26
S_OFFA, S_OFFW, S_MA, S_MW, S_CNT = 27, 28, 29, 30, 31
S_T0, S_T1, S_T2, S_T3 = 32, 33, 34, 35
S_KST = 54
S_P0 = 44
import os
PRO = int(os.environ.get("PRO", "4"))
ROT = int(os.environ.get("ROT", "0"))
NOMFMA = os.environ.get('NOMFMA') == '1'
NOW = os.environ.get('NOW') == '1'
NOA = os.environ.get('NOA') == '1'
NORD = os.environ.get('NORD') == '1'


def emit_ln(a, vals, mask, va_tmp, out_pk):
    acc, mean, t, u, rinv, d = [va_tmp + i for i in range(6)]
    a(f"v_mov_b32 v{acc}, 0")
    set_exec(a, mask)
    for v in vals:
        a(f"v_add_f32 v{acc}, v{acc}, v{v}")
    a("s_mov_b64 exec, -1")
    wave_reduce_add(a, acc, 36)
    a(f"s_mov_b32 s37, 0x{f32bits(1.0 / 576):x}")
    a(f"v_mov_b32 v{mean}, s36")
    a(f"v_mul_f32 v{mean}, s37, v{mean}")
    a(f"v_mov_b32 v{acc}, 0")
    set_exec(a, mask)
    for v in vals:
        a(f"v_sub_f32 v{d}, v{v}, v{mean}")
        a(f"v_fmac_f32 v{acc}, v{d}, v{d}")
    a("s_mov_b64 exec, -1")
    wave_reduce_add(a, acc, 36)
    a(f"v_mov_b32 v{t}, s36")
    a(f"v_mul_f32 v{t}, s37, v{t}")
    a(f"v_cvt_pk_bf16_f32 v{t}, v{t}, v{mean}")
    a(f"v_and_b32 v{mean}, 0xffff0000, v{t}")
    a(f"v_lshlrev_b32 v{t}, 16, v{t}")
    a(f"v_add_f32 v{t}, 0x{f32bits(1e-5):x}, v{t}")
    a(f"v_cvt_pk_bf16_f32 v{t}, v{t}, v{t}")
    a(f"v_lshlrev_b32 v{t}, 16, v{t}")
    a(f"v_sqrt_f32 v{t}, v{t}")
    a("s_nop 0")
    a(f"v_cvt_pk_bf16_f32 v{t}, v{t}, v{t}")
    a(f"v_lshlrev_b32 v{t}, 16, v{t}")
    a(f"v_rcp_f32 v{rinv}, v{t}")
    for i in range(0, len(vals), 2):
        a(f"v_sub_f32 v{d}, v{vals[i]}, v{mean}")
        a(f"v_sub_f32 v{u}, v{vals[i + 1]}, v{mean}")
        a(f"v_cvt_pk_bf16_f32 v{d}, v{d}, v{u}")
        a(f"v_and_b32 v{u}, 0xffff0000, v{d}")
        a(f"v_lshlrev_b32 v{d}, 16, v{d}")
        a(f"v_mul_f32 v{d}, v{d}, v{rinv}")
        a(f"v_mul_f32 v{u}, v{u}, v{rinv}")
        a(f"v_cvt_pk_bf16_f32 v{out_pk[i // 2]}, v{d}, v{u}")


class Gemm:
    def __init__(self, a, tag, BM, BN, BKS, NS, GM, GN, GK, KLEN, lda, ldw, epi, w_perm=True, swap=False):
        self.a = a
        self.tag = tag
        self.BM, self.BN, self.BKS, self.NS = BM, BN, BKS, NS
        self.GM, self.GN, self.GK = GM, GN, GK
        assert GM * GN * GK == 8
        self.TM = BM // GM // 16
        self.TN = BN // GN // 16
        self.KSW = BKS // 32 // GK
        self.NST = KLEN // BKS
        assert KLEN % BKS == 0
        self.lda, self.ldw = lda, ldw
        self.epi = epi
        self.w_perm = w_perm
        self.swap = swap
        self.RB = BKS * 2
        self.WB = BN * 2
        self.NA = BM * self.RB // 1024 // 8
        if self.WB == 288:
            assert BKS == 64
            self.NW = 3
            self.WBYTES = BKS * 288
        else:
            assert self.WB == 512 and BKS == 32
            self.NW = 2
            self.WBYTES = 16 * 1056
        self.ABYTES = BM * self.RB
        self.SS = self.ABYTES + self.WBYTES
        self.LDS = self.SS * NS
        assert self.LDS <= 163840
        self.D = self.NA + self.NW

    def alloc(self, va):
        self.vL = va.get()
        self.vT = va.get(8)
        self.vA_off = [va.get() for _ in range(self.NA)]
        self.vW_off = [va.get() for _ in range(self.NW)]
        nb = (self.LDS + 65535) // 65536
        self.nb = nb
        nka = self.KSW if self.RB == 128 else 1
        self.vA_rd = [[va.get() for _ in range(nb)] for _ in range(nka)]
        self.vW_rd = [va.get() for _ in range(nb)]
        self.fa = [[va.get(4, 4) for _ in range(self.TM)] for _ in range(2)]
        self.fw = [[va.get(4, 4) for _ in range(self.TN)] for _ in range(2)]
        self.acc = [[va.get(4, 4) for _ in range(self.TM)] for _ in range(self.TN)]

    def setup_addrs(self):
        a = self.a
        L, T = self.vL, self.vT
        RB = self.RB
        CPR = RB // 16
        RPI = 1024 // RB
        cs = {4: 2, 8: 3}[CPR]
        for ia in range(self.NA):
            a(f"s_mul_i32 s{S_T0}, s{S_WAVE}, {self.NA * RPI}")
            a(f"s_add_u32 s{S_T0}, s{S_T0}, {ia * RPI}")
            a(f"v_lshrrev_b32 v{T}, {cs}, v{L}")
            a(f"v_add_u32 v{T}, s{S_T0}, v{T}")
            if RB == 128:
                a(f"v_bfe_u32 v{T + 1}, v{T}, 1, 3")
            else:
                a(f"v_bfe_u32 v{T + 1}, v{T}, 3, 1")
                a(f"v_mul_u32_u24 v{T + 1}, 3, v{T + 1}")
            a(f"v_and_b32 v{T + 2}, {CPR - 1}, v{L}")
            a(f"v_xor_b32 v{T + 2}, v{T + 2}, v{T + 1}")
            a(f"v_lshlrev_b32 v{T + 2}, 4, v{T + 2}")
            a(f"v_add_u32 v{T}, s{S_M0}, v{T}")
            a(f"s_mov_b32 s{S_T1}, {self.lda}")
            a(f"v_mul_lo_u32 v{T}, v{T}, s{S_T1}")
            a(f"v_add_u32 v{self.vA_off[ia]}, v{T}, v{T + 2}")
        a(f"s_mul_i32 s{S_MA}, s{S_WAVE}, {self.NA * 1024}")
        a(f"s_lshl_b32 s{S_T2}, s{S_N0}, 1")
        a(f"s_mov_b32 s{S_T1}, {self.ldw}")
        if self.WB == 288:
            for i in range(3):
                a(f"v_add_u32 v{T}, {64 * i}, v{L}")
                a(f"v_mul_u32_u24 v{T + 1}, 57, v{T}")
                a(f"v_lshrrev_b32 v{T + 1}, 10, v{T + 1}")
                a(f"v_mul_u32_u24 v{T + 2}, 18, v{T + 1}")
                a(f"v_sub_u32 v{T + 2}, v{T}, v{T + 2}")
                a(f"s_lshl_b32 s{S_T0}, s{S_WAVE}, 3")
                a(f"v_add_u32 v{T + 1}, s{S_T0}, v{T + 1}")
                if self.w_perm:
                    a(f"v_bfe_u32 v{T + 3}, v{T + 1}, 2, 1")
                    a(f"v_bfe_u32 v{T + 4}, v{T + 1}, 3, 1")
                    a(f"v_and_b32 v{T + 1}, 0xfffffff3, v{T + 1}")
                    a(f"v_lshl_or_b32 v{T + 1}, v{T + 3}, 3, v{T + 1}")
                    a(f"v_lshl_or_b32 v{T + 1}, v{T + 4}, 2, v{T + 1}")
                a(f"v_mul_lo_u32 v{T + 1}, v{T + 1}, s{S_T1}")
                a(f"v_lshl_add_u32 v{T + 1}, v{T + 2}, 4, v{T + 1}")
                a(f"v_add_u32 v{self.vW_off[i]}, s{S_T2}, v{T + 1}")
            a(f"s_mul_i32 s{S_MW}, s{S_WAVE}, {144 * 16}")
        else:
            for i in range(2):
                a(f"s_lshl_b32 s{S_T0}, s{S_WAVE}, 1")
                a(f"s_add_u32 s{S_T0}, s{S_T0}, {i}")
                a(f"s_and_b32 s{S_T3}, s{S_T0}, 3")
                a(f"s_lshr_b32 s{S_T0}, s{S_T0}, 2")
                a(f"s_lshl_b32 s{S_T0}, s{S_T0}, 3")
                a(f"s_add_u32 s{S_T0}, s{S_T0}, s{S_T3}")
                a(f"v_lshrrev_b32 v{T}, 5, v{L}")
                a(f"v_lshlrev_b32 v{T}, 2, v{T}")
                a(f"v_add_u32 v{T}, s{S_T0}, v{T}")
                a(f"v_mul_lo_u32 v{T}, v{T}, s{S_T1}")
                a(f"v_and_b32 v{T + 1}, 31, v{L}")
                a(f"v_lshl_add_u32 v{T}, v{T + 1}, 4, v{T}")
                a(f"v_add_u32 v{self.vW_off[i]}, s{S_T2}, v{T}")
            a(f"s_mul_i32 s{S_MW}, s{S_WAVE}, {2 * 1056}")
        a(f"s_mul_i32 s{S_T0}, s{S_WM}, {self.TM * 16}")
        a(f"v_and_b32 v{T}, 15, v{L}")
        a(f"v_add_u32 v{T}, s{S_T0}, v{T}")
        a(f"v_lshrrev_b32 v{T + 1}, 4, v{L}")
        r0 = self.vA_rd[0][0]
        if RB == 128:
            if self.GK == 2:
                a(f"s_lshl_b32 s{S_T1}, s{S_GK}, 2")
                a(f"v_add_u32 v{T + 1}, s{S_T1}, v{T + 1}")
            a(f"v_bfe_u32 v{T + 2}, v{T}, 1, 3")
            a(f"v_xor_b32 v{T + 1}, v{T + 1}, v{T + 2}")
            a(f"v_lshlrev_b32 v{T + 1}, 4, v{T + 1}")
            a(f"v_lshl_add_u32 v{r0}, v{T}, 7, v{T + 1}")
            if len(self.vA_rd) == 2:
                a(f"v_xor_b32 v{self.vA_rd[1][0]}, 64, v{r0}")
        else:
            a(f"v_bfe_u32 v{T + 2}, v{T}, 3, 1")
            a(f"v_mul_u32_u24 v{T + 2}, 3, v{T + 2}")
            a(f"v_xor_b32 v{T + 1}, v{T + 1}, v{T + 2}")
            a(f"v_lshlrev_b32 v{T + 1}, 4, v{T + 1}")
            a(f"v_lshl_add_u32 v{r0}, v{T}, 6, v{T + 1}")
        for rs in self.vA_rd:
            for k in range(1, self.nb):
                a(f"v_add_u32 v{rs[k]}, 0x{65536 * k:x}, v{rs[0]}")
        w0 = self.vW_rd[0]
        a(f"v_lshrrev_b32 v{T}, 4, v{L}")
        a(f"v_bfe_u32 v{T + 1}, v{L}, 2, 2")
        a(f"v_and_b32 v{T + 2}, 3, v{L}")
        if self.WB == 288:
            a(f"v_lshrrev_b32 v{T + 3}, 1, v{T}")
            a(f"v_lshl_add_u32 v{T + 1}, v{T + 3}, 4, v{T + 1}")
            a(f"v_and_b32 v{T + 3}, 1, v{T}")
            a(f"v_lshl_add_u32 v{T + 1}, v{T + 3}, 2, v{T + 1}")
            a(f"v_mul_u32_u24 v{T + 1}, 288, v{T + 1}")
            a(f"v_lshl_add_u32 v{w0}, v{T + 2}, 3, v{T + 1}")
            if self.GK == 2:
                a(f"s_mul_i32 s{S_T1}, s{S_GK}, {32 * 288}")
                a(f"v_add_u32 v{w0}, s{S_T1}, v{w0}")
        else:
            a(f"v_lshl_add_u32 v{T + 1}, v{T}, 2, v{T + 1}")
            a(f"v_mul_u32_u24 v{T + 1}, 1056, v{T + 1}")
            a(f"v_lshl_add_u32 v{w0}, v{T + 2}, 3, v{T + 1}")
        a(f"s_mul_i32 s{S_T1}, s{S_WN}, {self.TN * 32}")
        a(f"v_add_u32 v{w0}, s{S_T1}, v{w0}")
        for k in range(1, self.nb):
            a(f"v_add_u32 v{self.vW_rd[k]}, 0x{65536 * k:x}, v{w0}")

    def rotate(self, cm, cn):
        a = self.a
        cm, cn = cm * ROT, cn * ROT
        a(f"s_lshr_b32 s{S_T0}, s2, 3")
        a(f"s_and_b32 s{S_T1}, s{S_T0}, 3")
        a(f"s_lshr_b32 s{S_T0}, s{S_T0}, 2")
        a(f"s_mul_i32 s{S_T0}, s{S_T0}, {cm}")
        a(f"s_mul_i32 s{S_T1}, s{S_T1}, {cn}")
        a(f"s_add_u32 s{S_KST}, s{S_T0}, s{S_T1}")
        a(f"s_cmp_ge_u32 s{S_KST}, {self.NST}")
        a(f"s_cselect_b32 s{S_T0}, {self.NST}, 0")
        a(f"s_sub_u32 s{S_KST}, s{S_KST}, s{S_T0}")
        a(f"s_mul_i32 s{S_T0}, s{S_KST}, {self.BKS * 2}")
        a(f"s_add_u32 s{S_OFFA}, s{S_OFFA}, s{S_T0}")
        a(f"s_mul_i32 s{S_T0}, s{S_KST}, 0x{self.BKS * self.ldw:x}")
        a(f"s_add_u32 s{S_OFFW}, s{S_OFFW}, s{S_T0}")

    def zero_acc(self):
        for row in self.acc:
            for r in row:
                for j in range(4):
                    self.a(f"v_mov_b32 v{r + j}, 0")

    def dma_items(self, buf):
        base = buf * self.SS
        it = []
        for ia in range(self.NA):
            it.append([f"s_add_u32 m0, s{S_MA}, 0x{base + ia * 1024:x}", "s_nop 0",
                       f"buffer_load_dwordx4 v{self.vA_off[ia]}, s[{S_A}:{S_A + 3}], s{S_OFFA} offen lds"])
        wb = base + self.ABYTES
        for i in range(self.NW):
            step = 1024 if self.WB == 288 else 1056
            g = [f"s_add_u32 m0, s{S_MW}, 0x{wb + i * step:x}"]
            if self.WB == 288 and i == 2:
                g += ["s_mov_b64 exec, 0xffff",
                      f"buffer_load_dwordx4 v{self.vW_off[i]}, s[{S_W}:{S_W + 3}], s{S_OFFW} offen lds",
                      "s_mov_b64 exec, -1"]
            else:
                g += ["s_nop 0", f"buffer_load_dwordx4 v{self.vW_off[i]}, s[{S_W}:{S_W + 3}], s{S_OFFW} offen lds"]
            it.append(g)
        if NOA:
            it = [[x for x in gg if not (x.startswith("buffer_load") and f"s[{S_A}:" in x)] for gg in it]
        if NOW:
            it = [[x for x in gg if not (x.startswith("buffer_load") and f"s[{S_W}:" in x)] for gg in it]
        it.append([f"s_add_u32 s{S_OFFA}, s{S_OFFA}, {self.BKS * 2}",
                   f"s_add_u32 s{S_OFFW}, s{S_OFFW}, 0x{self.BKS * self.ldw:x}",
                   f"s_add_u32 s{S_KST}, s{S_KST}, 1",
                   f"s_cmp_eq_u32 s{S_KST}, {self.NST}",
                   f"s_cselect_b32 s{S_T2}, 0x{self.NST * self.BKS * 2:x}, 0",
                   f"s_cselect_b32 s{S_T3}, 0x{self.NST * self.BKS * self.ldw:x}, 0",
                   f"s_cselect_b32 s{S_KST}, 0, s{S_KST}",
                   f"s_sub_u32 s{S_OFFA}, s{S_OFFA}, s{S_T2}",
                   f"s_sub_u32 s{S_OFFW}, s{S_OFFW}, s{S_T3}"])
        return it

    def rd(self, regs, off):
        return regs[off >> 16], off & 0xffff

    def frag_reads(self, buf, ks, fb):
        base = buf * self.SS
        out = []
        ka = ks if len(self.vA_rd) == 2 else 0
        ksoff = ks * 32 * 288 if (self.WB == 288 and self.GK == 1) else 0
        sec = 8 * 288 if self.WB == 288 else 512
        for tn in range(self.TN):
            o = base + self.ABYTES + ksoff + tn * 32
            r, im = self.rd(self.vW_rd, o)
            out.append(f"ds_read_b64_tr_b16 {vr(self.fw[fb][tn], 2)}, v{r} offset:{im}")
            r, im = self.rd(self.vW_rd, o + sec)
            out.append(f"ds_read_b64_tr_b16 {vr(self.fw[fb][tn] + 2, 2)}, v{r} offset:{im}")
            if tn == 0:
                for tm in range(self.TM):
                    r, im = self.rd(self.vA_rd[ka], base + tm * 16 * self.RB)
                    out.append(f"ds_read_b128 {vr(self.fa[fb][tm], 4)}, v{r} offset:{im}")
        if NORD:
            out = ["s_nop 0"] * len(out)
        return out

    def mfmas(self, fb):
        out = []
        for tn in range(self.TN):
            for tm in range(self.TM):
                c = vr(self.acc[tn][tm], 4)
                w = vr(self.fw[fb][tn], 4)
                x = vr(self.fa[fb][tm], 4)
                if self.swap:
                    out.append(f"v_mfma_f32_16x16x32_bf16 {c}, {x}, {w}, {c}")
                else:
                    out.append(f"v_mfma_f32_16x16x32_bf16 {c}, {w}, {x}, {c}")
        if NOMFMA:
            out = ["s_nop 0"] * len(out)
        return out

    def stage(self, s_buf, par, issue, vm, has_next):
        a = self.a
        for ks in range(self.KSW):
            last = ks == self.KSW - 1
            a("s_waitcnt lgkmcnt(0)")
            fill = []
            if last:
                if has_next:
                    a(f"s_waitcnt vmcnt({vm})")
                    a("s_barrier")
                    fill += self.frag_reads((s_buf + 1) % self.NS, 0, par ^ 1)
                    if issue:
                        d = self.dma_items(s_buf)
                        f2 = []
                        step = max(1, len(fill) // len(d))
                        di = 0
                        for i, f in enumerate(fill):
                            f2.append(f)
                            if i % step == step - 1 and di < len(d):
                                f2.append(d[di]); di += 1
                        f2 += d[di:]
                        fill = f2
            else:
                fill += self.frag_reads(s_buf, ks + 1, par ^ 1)
            interleave(a, self.mfmas(par), fill)
            par ^= 1
        return par

    def mainloop(self):
        a = self.a
        NS, NST, D = self.NS, self.NST, self.D
        stamp(a, 1)
        a(f"s_waitcnt vmcnt({(PRO - 1) * D})")
        a("s_barrier")
        stamp(a, 2)
        a.many(self.frag_reads(0, 0, 0))
        for b in range(PRO, NS):
            for gg in self.dma_items(b):
                a.many(gg)
        par = 0
        nmain = NST - NS
        r = nmain % NS
        s = 0
        for _ in range(r):
            par = self.stage(s % NS, par, True, (NS - 2) * D, True)
            s += 1
        trips = (nmain - r) // NS
        if trips > 0:
            assert (NS * self.KSW) % 2 == 0
            lab = a.newlabel(self.tag + "_loop")
            a(f"s_mov_b32 s{S_CNT}, {trips}")
            a.label(lab)
            for i in range(NS):
                par = self.stage((s + i) % NS, par, True, (NS - 2) * D, True)
            a(f"s_sub_u32 s{S_CNT}, s{S_CNT}, 1")
            a(f"s_cmp_lg_u32 s{S_CNT}, 0")
            a(f"s_cbranch_scc1 {lab}")
            s += trips * NS
        while s < NST:
            vm = (min(s + NS - 1, NST - 1) - (s + 1)) * D if s + 1 < NST else 0
            par = self.stage(s % NS, par, False, vm, s + 1 < NST)
            s += 1
        a("s_nop 15")
        stamp(a, 3)

    def prologue_dma(self):
        for b in range(PRO):
            for g in self.dma_items(b):
                self.a.many(g)


def common_head(a, nwg, endlab):
    a(f"s_cmp_ge_u32 s2, {nwg}")
    a(f"s_cbranch_scc1 {endlab}")
    stamp(a, 0)


def wave_ids(a, g):
    a(f"v_lshrrev_b32 v{g.vT}, 6, v0")
    a(f"v_and_b32 v{g.vL}, 63, v0")
    a("s_nop 0")
    a(f"v_readfirstlane_b32 s{S_WAVE}, v{g.vT}")
    a("s_nop 3")
    gm = g.GM.bit_length() - 1
    gn = g.GN.bit_length() - 1
    a(f"s_and_b32 s{S_WM}, s{S_WAVE}, {g.GM - 1}")
    a(f"s_lshr_b32 s{S_T0}, s{S_WAVE}, {gm}")
    a(f"s_and_b32 s{S_WN}, s{S_T0}, {g.GN - 1}")
    a(f"s_lshr_b32 s{S_GK}, s{S_T0}, {gn}")


def gen_kv(a):
    name = "kv_proj_kernel"
    a.begin_kernel(name)
    end = "L_kv_end"
    common_head(a, 256, end)
    gK = Gemm(a, "kvk", 256, 256, 32, 4, 4, 2, 1, 512, 1024, 8192, "K", swap=False)
    gV = Gemm(a, "kvv", 256, 256, 32, 4, 4, 2, 1, 512, 1024, 8192, "V", swap=True)
    va = VAlloc(1)
    gK.alloc(va)
    va2 = VAlloc(1)
    gV.alloc(va2)
    g = gK
    a(f"s_load_dwordx2 s[{S_P0}:{S_P0 + 1}], s[0:1], {KARG['ckv']}")
    a(f"s_load_dwordx4 s[{S_P0 + 4}:{S_P0 + 7}], s[0:1], {KARG['wuk']}")
    a(f"s_load_dwordx2 s[{S_P0 + 2}:{S_P0 + 3}], s[0:1], {KARG['ws']}")
    a(f"s_load_dwordx2 s[52:53], s[0:1], {KARG['x']}")
    wave_ids(a, g)
    a(f"s_and_b32 s{S_T0}, s2, 7")
    a(f"s_lshr_b32 s{S_T1}, s2, 3")
    a(f"s_and_b32 s{S_T2}, s{S_T1}, 3")
    a(f"s_lshl_b32 s{S_T0}, s{S_T0}, 2")
    a(f"s_add_u32 s{S_T0}, s{S_T0}, s{S_T2}")
    a(f"s_lshr_b32 s{S_T1}, s{S_T1}, 2")
    a(f"s_lshl_b32 s{S_M0}, s{S_T1}, 8")
    a(f"s_and_b32 s{S_T2}, s{S_T0}, 15")
    a(f"s_lshl_b32 s{S_N0}, s{S_T2}, 8")
    a(f"s_lshr_b32 s{S_SPLIT}, s{S_T0}, 4")
    a("s_waitcnt lgkmcnt(0)")
    srd_from(a, S_A, S_P0, 0, 2048 * 1024)
    a(f"s_cmp_eq_u32 s{S_SPLIT}, 0")
    a(f"s_cselect_b32 s{S_W}, s{S_P0 + 4}, s{S_P0 + 6}")
    a(f"s_cselect_b32 s{S_W + 1}, s{S_P0 + 5}, s{S_P0 + 7}")
    a(f"s_mov_b32 s{S_W + 2}, 0x{512 * 8192:x}")
    a(f"s_mov_b32 s{S_W + 3}, 0x00020000")
    a(f"s_mov_b32 s{S_T1}, 0x{WS_V:x}")
    a(f"s_cselect_b32 s{S_T0}, 0x{WS_K:x}, s{S_T1}")
    a(f"s_add_u32 s{S_O}, s{S_P0 + 2}, s{S_T0}")
    a(f"s_addc_u32 s{S_O + 1}, s{S_P0 + 3}, 0")
    a(f"s_mov_b32 s{S_O + 2}, 0x{16 * MB:x}")
    a(f"s_mov_b32 s{S_O + 3}, 0x00020000")
    srd_from(a, S_X, 52, 0, 2048 * 1152)
    srd_from(a, S_Y, S_P0 + 2, WS_XN, 2048 * 1152)
    a(f"s_mov_b32 s{S_OFFA}, 0")
    a(f"s_mov_b32 s{S_OFFW}, 0")
    g.rotate(2, 5)
    if os.environ.get("TOUCH", "0") == "1":
        vd = max(va.hi, va2.hi)
        a(f"s_lshr_b32 s{S_T0}, s2, 3")
        a(f"s_lshl_b32 s{S_T1}, s{S_T0}, 3")
        a(f"s_add_u32 s{S_T1}, s{S_T1}, s{S_WAVE}")
        a(f"s_lshl_b32 s{S_T1}, s{S_T1}, 13")
        a(f"v_lshlrev_b32 v{g.vT}, 7, v{g.vL}")
        a(f"buffer_load_dword v{vd}, v{g.vT}, s[{S_A}:{S_A + 3}], s{S_T1} offen")
        a(f"s_and_b32 s{S_T1}, s{S_WAVE}, 3")
        a(f"s_lshl_b32 s{S_T1}, s{S_T1}, 2")
        a(f"s_lshl_b32 s{S_T0}, s{S_T0}, 4")
        a(f"s_add_u32 s{S_T0}, s{S_T0}, s{S_T1}")
        a(f"s_lshl_b32 s{S_T0}, s{S_T0}, 13")
        a(f"s_and_b32 s{S_T1}, s2, 3")
        a(f"s_lshl_b32 s{S_T1}, s{S_T1}, 11")
        a(f"s_add_u32 s{S_T0}, s{S_T0}, s{S_T1}")
        a(f"v_lshrrev_b32 v{g.vT}, 4, v{g.vL}")
        a(f"v_lshlrev_b32 v{g.vT}, 13, v{g.vT}")
        a(f"v_and_b32 v{g.vT + 1}, 15, v{g.vL}")
        a(f"v_lshl_add_u32 v{g.vT}, v{g.vT + 1}, 7, v{g.vT}")
        a(f"buffer_load_dword v{vd}, v{g.vT}, s[{S_W}:{S_W + 3}], s{S_T0} offen")
    ln_base = g.fa[0][0]
    raw = ln_base
    vals = [ln_base + 8 + i for i in range(16)]
    tmp = ln_base + 24
    voff = ln_base + 30
    a(f"s_lshl_b32 s{S_T0}, s2, 3")
    a(f"s_add_u32 s{S_T0}, s{S_T0}, s{S_WAVE}")
    a(f"s_mul_i32 s{S_T3}, s{S_T0}, 1152")
    a(f"v_lshlrev_b32 v{voff}, 5, v{g.vL}")
    mask = (1 << 36) - 1
    set_exec(a, mask)
    a(f"buffer_load_dwordx4 {vr(raw, 4)}, v{voff}, s[{S_X}:{S_X + 3}], s{S_T3} offen")
    a(f"buffer_load_dwordx4 {vr(raw + 4, 4)}, v{voff}, s[{S_X}:{S_X + 3}], s{S_T3} offen offset:16")
    a("s_mov_b64 exec, -1")
    a(f"s_lshr_b32 s38, s{S_T0}, 5")
    a(f"s_mul_i32 s38, s38, 36864")
    a(f"s_and_b32 s39, s{S_T0}, 31")
    a(f"s_lshl_b32 s39, s39, 4")
    a(f"s_add_u32 s38, s38, s39")
    g.setup_addrs()
    g.prologue_dma()
    if os.environ.get('PREF', '1') == '1':
        vd = max(va.hi, va2.hi)
        va.get()
        a(f"s_load_dwordx2 s[56:57], s[0:1], {KARG['wq']}")
        a(f"s_lshl_b32 s{S_T0}, s2, 3")
        a(f"s_add_u32 s{S_T0}, s{S_T0}, s{S_WAVE}")
        a(f"s_lshl_b32 s{S_T0}, s{S_T0}, 13")
        a(f"v_lshlrev_b32 v{g.vT}, 7, v{g.vL}")
        a("s_waitcnt lgkmcnt(0)")
        srd_from(a, S_X, 56, 0, 576 * 8192)
        a(f"buffer_load_dword v{vd}, v{g.vT}, s[{S_X}:{S_X + 3}], s{S_T0} offen")
        if os.environ.get("CPREF", "0") == "1":
            a("s_getpc_b64 s[56:57]")
            a.label("L_kv_pc")
            a("s_add_u32 s56, s56, attn_kernel-L_kv_pc")
            a("s_addc_u32 s57, s57, 0")
            a(f"s_and_b32 s{S_T1}, s2, 15")
            a(f"s_lshl_b32 s{S_T1}, s{S_T1}, 13")
            a(f"v_add_u32 v{g.vT + 1}, s{S_T1}, v{g.vT}")
            a(f"s_mov_b32 s{S_T1}, L_text_end-attn_kernel-4")
            a(f"v_min_u32 v{g.vT + 1}, s{S_T1}, v{g.vT + 1}")
            a(f"global_load_dword v{vd}, v{g.vT + 1}, s[56:57]")
            a(f"s_waitcnt vmcnt({PRO * g.D + 2})")
        else:
            a(f"s_waitcnt vmcnt({PRO * g.D + 1})")
    else:
        a(f"s_waitcnt vmcnt({PRO * g.D})")
    for i in range(8):
        a(f"v_lshlrev_b32 v{vals[2 * i]}, 16, v{raw + i}")
        a(f"v_and_b32 v{vals[2 * i + 1]}, 0xffff0000, v{raw + i}")
    emit_ln(a, vals, mask, tmp, [raw + i for i in range(8)])
    set_exec(a, mask)
    a(f"v_lshlrev_b32 v{voff}, 10, v{g.vL}")
    a(f"buffer_store_dwordx4 {vr(raw, 4)}, v{voff}, s[{S_Y}:{S_Y + 3}], s38 offen")
    a(f"buffer_store_dwordx4 {vr(raw + 4, 4)}, v{voff}, s[{S_Y}:{S_Y + 3}], s38 offen offset:512")
    a("s_mov_b64 exec, -1")
    a("s_nop 1")
    g.zero_acc()
    a(f"s_cmp_eq_u32 s{S_SPLIT}, 0")
    a("s_cbranch_scc0 L_kv_v")
    for gg in (gK, gV):
        if gg is gV:
            a.label("L_kv_v")
        gg.mainloop()
        T = gg.vT
        L = gg.vL
        a(f"s_lshr_b32 s{S_T0}, s{S_N0}, 7")
        a(f"s_add_u32 s{S_T0}, s{S_T0}, s{S_WN}")
        a(f"s_lshl_b32 s{S_T0}, s{S_T0}, 19")
        a(f"s_lshr_b32 s{S_T1}, s{S_M0}, 6")
        a(f"s_add_u32 s{S_T1}, s{S_T1}, s{S_WM}")
        a(f"s_lshl_b32 s{S_T1}, s{S_T1}, 14")
        a(f"s_add_u32 s{S_T0}, s{S_T0}, s{S_T1}")
        cst = 1024 if gg is gK else 2048
        a(f"v_bfe_u32 v{T}, v{L}, 4, 1")
        a(f"v_mul_u32_u24 v{T}, {cst}, v{T}")
        a(f"v_and_b32 v{T + 1}, 15, v{L}")
        a(f"v_lshl_add_u32 v{T}, v{T + 1}, 4, v{T}")
        a(f"v_lshrrev_b32 v{T + 1}, 5, v{L}")
        a(f"v_lshl_add_u32 v{T}, v{T + 1}, 8, v{T}")
        if gg is gK:
            prs = [((tn, tm), (tn, tm + 1), tn * 2048, tm * 256) for tn in range(gg.TN) for tm in range(0, gg.TM, 2)]
        else:
            prs = [((tn, tm), (tn + 1, tm), tm * 4096, tn * 256) for tm in range(gg.TM) for tn in range(0, gg.TN, 2)]
        stg = [gg.fa[0][0], gg.fa[0][1], gg.fa[0][2], gg.fa[0][3]]
        for k, (X, Y, so, im) in enumerate(prs):
            p = stg[k & 3]
            cx, cy = gg.acc[X[0]][X[1]], gg.acc[Y[0]][Y[1]]
            a(f"v_cvt_pk_bf16_f32 v{p}, v{cx}, v{cx + 1}")
            a(f"v_cvt_pk_bf16_f32 v{p + 1}, v{cx + 2}, v{cx + 3}")
            a(f"v_cvt_pk_bf16_f32 v{p + 2}, v{cy}, v{cy + 1}")
            a(f"v_cvt_pk_bf16_f32 v{p + 3}, v{cy + 2}, v{cy + 3}")
            a(f"s_add_u32 s{S_T1}, s{S_T0}, {so}")
            a("s_nop 0")
            a(f"v_permlane32_swap_b32 v{p}, v{p + 2}")
            a(f"v_permlane32_swap_b32 v{p + 1}, v{p + 3}")
            a(f"buffer_store_dwordx4 {vr(p, 4)}, v{T}, s[{S_O}:{S_O + 3}], s{S_T1} offen offset:{im}")
        stamp(a, 4)
        stamp_dump(a, 5, 0, T, S_WAVE)
        a("s_endpgm")
    a.label(end)
    a("s_endpgm")
    a.end_kernel(name, max(va.hi, va2.hi))
    return (name, 256, 512, gK.LDS)


def gen_splitk(a, name, act_off, act_ld, wkey, klen, w_perm, out_off):
    a.begin_kernel(name)
    end = f"L_{name}_end"
    common_head(a, 256, end)
    g = Gemm(a, name[:4], 128, 144, 64, 4, 4, 1, 2, klen, act_ld, 1152, "P", w_perm=w_perm)
    va = VAlloc(1)
    g.alloc(va)
    a(f"s_load_dwordx2 s[{S_P0}:{S_P0 + 1}], s[0:1], {KARG[wkey]}")
    a(f"s_load_dwordx2 s[{S_P0 + 2}:{S_P0 + 3}], s[0:1], {KARG['ws']}")
    wave_ids(a, g)
    a(f"s_and_b32 s{S_SPLIT}, s2, 3")
    a(f"s_bfe_u32 s{S_T0}, s2, 0x10002")
    a(f"s_lshr_b32 s{S_T1}, s2, 3")
    a(f"s_and_b32 s{S_T2}, s{S_T1}, 3")
    a(f"s_mul_i32 s{S_N0}, s{S_T2}, 144")
    a(f"s_lshr_b32 s{S_T1}, s{S_T1}, 2")
    a(f"s_lshl_b32 s{S_T0}, s{S_T0}, 3")
    a(f"s_add_u32 s{S_T1}, s{S_T1}, s{S_T0}")
    a(f"s_lshl_b32 s{S_M0}, s{S_T1}, 7")
    a("s_waitcnt lgkmcnt(0)")
    srd_from(a, S_A, S_P0 + 2, act_off, 2048 * act_ld)
    srd_from(a, S_W, S_P0, 0, klen * 4 * 1152)
    srd_from(a, S_O, S_P0 + 2, out_off, 4 * 2048 * 2304)
    a(f"s_mul_i32 s{S_OFFA}, s{S_SPLIT}, {klen * 2}")
    a(f"s_mul_i32 s{S_OFFW}, s{S_SPLIT}, {klen * 1152}")
    g.rotate(2, 5)
    g.setup_addrs()
    g.prologue_dma()
    g.zero_acc()
    g.mainloop()
    T, L = g.vT, g.vL
    a("s_barrier")
    a(f"s_mul_i32 s{S_T0}, s{S_WM}, 18432")
    a(f"v_lshlrev_b32 v{T}, 4, v{L}")
    a(f"v_add_u32 v{T}, s{S_T0}, v{T}")
    a(f"s_cmp_eq_u32 s{S_GK}, 0")
    a(f"s_cbranch_scc1 L_{name}_g0")
    j = 0
    for tn in range(g.TN):
        for tm in range(g.TM):
            a(f"ds_write_b128 v{T}, {vr(g.acc[tn][tm], 4)} offset:{j * 1024}")
            j += 1
    a("s_waitcnt lgkmcnt(0)")
    a("s_barrier")
    a("s_endpgm")
    a.label(f"L_{name}_g0")
    a("s_barrier")
    j = 0
    rd = []
    for tn in range(g.TN):
        for tm in range(g.TM):
            rd.append((g.acc[tn][tm], g.fw[j & 1][j >> 1] if (j >> 1) < g.TN else g.fa[j & 1][0]))
            a(f"ds_read_b128 {vr(rd[-1][1], 4)}, v{T} offset:{j * 1024}")
            j += 1
    a(f"s_mul_i32 s{S_T0}, s{S_SPLIT}, {2048 * 2304}")
    a(f"s_mul_i32 s{S_T1}, s{S_M0}, 2304")
    a(f"s_add_u32 s{S_T0}, s{S_T0}, s{S_T1}")
    a(f"s_lshl_b32 s{S_T1}, s{S_N0}, 2")
    a(f"s_add_u32 s{S_T0}, s{S_T0}, s{S_T1}")
    a(f"s_lshl_b32 s{S_T1}, s{S_WM}, 5")
    a(f"v_and_b32 v{T + 1}, 15, v{L}")
    a(f"v_add_u32 v{T + 1}, s{S_T1}, v{T + 1}")
    a(f"v_mul_u32_u24 v{T + 1}, 2304, v{T + 1}")
    a(f"v_lshrrev_b32 v{T + 2}, 4, v{L}")
    a(f"v_lshl_add_u32 v{T + 1}, v{T + 2}, 4, v{T + 1}")
    a(f"v_add_u32 v{T + 2}, {16 * 2304}, v{T + 1}")
    j = 0
    for tn in range(g.TN):
        for tm in range(g.TM):
            c, f = rd[j]
            a(f"s_waitcnt lgkmcnt({min(15, len(rd) - 1 - j)})")
            for q in range(4):
                a(f"v_add_f32 v{c + q}, v{c + q}, v{f + q}")
            a(f"buffer_store_dwordx4 {vr(c, 4)}, v{T + 1 + tm}, s[{S_O}:{S_O + 3}], s{S_T0} offen offset:{tn * 64}")
            j += 1
    stamp(a, 4)
    stamp_dump(a, 5, 2 if name.startswith("oproj") else 5, T, S_WAVE)
    a.label(end)
    a("s_endpgm")
    a.end_kernel(name, va.hi)
    return (name, 256, 512, g.LDS)


def gen_up(a):
    name = "mlp_up_kernel"
    a.begin_kernel(name)
    end = f"L_{name}_end"
    common_head(a, 256, end)
    g = Gemm(a, "up", 256, 144, 64, 3, 8, 1, 1, 576, 1152, 9216, "U", w_perm=True)
    va = VAlloc(1)
    g.alloc(va)
    bias = [va.get(2, 2) for _ in range(g.TN)]
    a(f"s_load_dwordx4 s[{S_P0 + 4}:{S_P0 + 7}], s[0:1], {KARG['w1']}")
    a(f"s_load_dwordx2 s[{S_P0 + 2}:{S_P0 + 3}], s[0:1], {KARG['ws']}")
    wave_ids(a, g)
    a(f"s_and_b32 s{S_T0}, s2, 7")
    a(f"s_lshr_b32 s{S_T1}, s2, 3")
    a(f"s_and_b32 s{S_T2}, s{S_T1}, 3")
    a(f"s_lshl_b32 s{S_T0}, s{S_T0}, 2")
    a(f"s_add_u32 s{S_T0}, s{S_T0}, s{S_T2}")
    a(f"s_lshr_b32 s{S_T1}, s{S_T1}, 2")
    a(f"s_lshl_b32 s{S_M0}, s{S_T1}, 8")
    a(f"s_mul_i32 s{S_N0}, s{S_T0}, 144")
    a("s_waitcnt lgkmcnt(0)")
    srd_from(a, S_A, S_P0 + 2, WS_HN, 2048 * 1152)
    srd_from(a, S_W, S_P0 + 4, 0, 576 * 9216)
    srd_from(a, S_O, S_P0 + 2, WS_ACT, 2048 * 9216)
    srd_from(a, S_X, S_P0 + 6, 0, 9216)
    a(f"s_mov_b32 s{S_OFFA}, 0")
    a(f"s_mov_b32 s{S_OFFW}, 0")
    g.rotate(1, 2)
    T, L = g.vT, g.vL
    a(f"v_lshrrev_b32 v{T}, 4, v{L}")
    a(f"v_lshlrev_b32 v{T}, 3, v{T}")
    a(f"s_lshl_b32 s{S_T0}, s{S_N0}, 1")
    for tn in range(g.TN):
        a(f"buffer_load_dwordx2 {vr(bias[tn], 2)}, v{T}, s[{S_X}:{S_X + 3}], s{S_T0} offen offset:{tn * 32}")
    g.setup_addrs()
    g.prologue_dma()
    g.zero_acc()
    g.mainloop()
    a(f"s_mul_i32 s{S_T0}, s{S_M0}, 9216")
    a(f"s_lshl_b32 s{S_T1}, s{S_N0}, 1")
    a(f"s_add_u32 s{S_T0}, s{S_T0}, s{S_T1}")
    a(f"s_lshl_b32 s{S_T1}, s{S_WM}, 5")
    a(f"v_and_b32 v{T}, 15, v{L}")
    a(f"v_add_u32 v{T}, s{S_T1}, v{T}")
    a(f"v_mul_u32_u24 v{T}, 9216, v{T}")
    a(f"v_lshrrev_b32 v{T + 1}, 4, v{L}")
    a(f"v_lshl_add_u32 v{T}, v{T + 1}, 3, v{T}")
    a(f"v_add_u32 v{T + 1}, {16 * 9216}, v{T}")
    bf = g.fw[0][0]
    k = 0
    for tn in range(g.TN):
        b = bias[tn]
        a(f"v_lshlrev_b32 v{bf}, 16, v{b}")
        a(f"v_and_b32 v{bf + 1}, 0xffff0000, v{b}")
        a(f"v_lshlrev_b32 v{bf + 2}, 16, v{b + 1}")
        a(f"v_and_b32 v{bf + 3}, 0xffff0000, v{b + 1}")
        for tm in range(g.TM):
            c = g.acc[tn][tm]
            p = T + 2 + 2 * (k & 1)
            k += 1
            for q in range(4):
                a(f"v_add_f32 v{c + q}, v{c + q}, v{bf + q}")
            for q in range(4):
                a(f"v_max_f32 v{c + q}, 0, v{c + q}")
            for q in range(4):
                a(f"v_mul_f32 v{c + q}, v{c + q}, v{c + q}")
            a(f"v_cvt_pk_bf16_f32 v{p}, v{c}, v{c + 1}")
            a(f"v_cvt_pk_bf16_f32 v{p + 1}, v{c + 2}, v{c + 3}")
            a(f"buffer_store_dwordx2 {vr(p, 2)}, v{T + tm}, s[{S_O}:{S_O + 3}], s{S_T0} offen offset:{tn * 32}")
    stamp(a, 4)
    stamp_dump(a, 5, 4, T, S_WAVE)
    a.label(end)
    a("s_endpgm")
    a.end_kernel(name, va.hi)
    return (name, 256, 512, g.LDS)


def gen_reduce(a, name, part_off, first):
    a.begin_kernel(name)
    end = f"L_{name}_end"
    common_head(a, 512, end)
    a(f"s_load_dwordx2 s[{S_P0 + 2}:{S_P0 + 3}], s[0:1], {KARG['ws']}")
    if first:
        a(f"s_load_dwordx2 s[{S_P0}:{S_P0 + 1}], s[0:1], {KARG['x']}")
    else:
        a(f"s_load_dwordx4 s[{S_P0 + 4}:{S_P0 + 7}], s[0:1], {KARG['b2']}")
    vL, vT = 1, 2
    a(f"v_lshrrev_b32 v{vT}, 6, v0")
    a(f"v_and_b32 v{vL}, 63, v0")
    a("s_nop 0")
    a(f"v_readfirstlane_b32 s{S_WAVE}, v{vT}")
    a("s_nop 3")
    a(f"s_lshl_b32 s{S_T0}, s2, 2")
    a(f"s_add_u32 s{S_T0}, s{S_T0}, s{S_WAVE}")
    a(f"s_mul_i32 s{S_T1}, s{S_T0}, 2304")
    a(f"s_mul_i32 s{S_T2}, s{S_T0}, 1152")
    a("s_waitcnt lgkmcnt(0)")
    srd_from(a, S_A, S_P0 + 2, part_off, 4 * 2048 * 2304)
    if first:
        srd_from(a, S_X, S_P0, 0, 2048 * 1152)
        srd_from(a, S_O, S_P0 + 2, WS_H, 2048 * 1152)
        srd_from(a, S_Y, S_P0 + 2, WS_HN, 2048 * 1152)
    else:
        srd_from(a, S_X, S_P0 + 2, WS_H, 2048 * 1152)
        srd_from(a, S_O, S_P0 + 6, 0, 2048 * 1152)
        srd_from(a, S_Y, S_P0 + 4, 0, 1152)
    vo4, vo2 = 4, 5
    a(f"v_mul_u32_u24 v{vo4}, 48, v{vL}")
    a(f"v_mul_u32_u24 v{vo2}, 24, v{vL}")
    P = 8
    X = 56
    B = 62
    V = 68
    TM = 80
    mask = (1 << 48) - 1
    set_exec(a, mask)
    for s in range(4):
        if s:
            a(f"s_add_u32 s{S_T1}, s{S_T1}, {2048 * 2304}")
        for j in range(3):
            a(f"buffer_load_dwordx4 {vr(P + s * 12 + j * 4, 4)}, v{vo4}, s[{S_A}:{S_A + 3}], s{S_T1} offen offset:{j * 16}")
    for j in range(3):
        a(f"buffer_load_dwordx2 {vr(X + 2 * j, 2)}, v{vo2}, s[{S_X}:{S_X + 3}], s{S_T2} offen offset:{j * 8}")
    if not first:
        for j in range(3):
            a(f"buffer_load_dwordx2 {vr(B + 2 * j, 2)}, v{vo2}, s[{S_Y}:{S_Y + 3}], 0 offen offset:{j * 8}")
    a("s_waitcnt vmcnt(0)")
    for i in range(12):
        a(f"v_add_f32 v{P + i}, v{P + i}, v{P + 12 + i}")
        a(f"v_add_f32 v{P + 24 + i}, v{P + 24 + i}, v{P + 36 + i}")
    for i in range(12):
        a(f"v_add_f32 v{P + i}, v{P + i}, v{P + 24 + i}")
    for i in range(6):
        s0, s1 = P + 2 * i, P + 2 * i + 1
        a(f"v_cvt_pk_bf16_f32 v{TM}, v{s0}, v{s1}")
        a(f"v_lshlrev_b32 v{s0}, 16, v{TM}")
        a(f"v_and_b32 v{s1}, 0xffff0000, v{TM}")
        if not first:
            a(f"v_lshlrev_b32 v{TM}, 16, v{B + i}")
            a(f"v_and_b32 v{TM + 1}, 0xffff0000, v{B + i}")
            a(f"v_add_f32 v{s0}, v{s0}, v{TM}")
            a(f"v_add_f32 v{s1}, v{s1}, v{TM + 1}")
            a(f"v_cvt_pk_bf16_f32 v{TM}, v{s0}, v{s1}")
            a(f"v_lshlrev_b32 v{s0}, 16, v{TM}")
            a(f"v_and_b32 v{s1}, 0xffff0000, v{TM}")
        a(f"v_lshlrev_b32 v{TM}, 16, v{X + i}")
        a(f"v_and_b32 v{TM + 1}, 0xffff0000, v{X + i}")
        a(f"v_add_f32 v{s0}, v{s0}, v{TM}")
        a(f"v_add_f32 v{s1}, v{s1}, v{TM + 1}")
        a(f"v_cvt_pk_bf16_f32 v{X + i}, v{s0}, v{s1}")
        if first:
            a(f"v_lshlrev_b32 v{V + 2 * i}, 16, v{X + i}")
            a(f"v_and_b32 v{V + 2 * i + 1}, 0xffff0000, v{X + i}")
    for j in range(3):
        a(f"buffer_store_dwordx2 {vr(X + 2 * j, 2)}, v{vo2}, s[{S_O}:{S_O + 3}], s{S_T2} offen offset:{j * 8}")
    a("s_mov_b64 exec, -1")
    if first:
        emit_ln(a, [V + i for i in range(12)], mask, TM, [B + i for i in range(6)])
        set_exec(a, mask)
        for j in range(3):
            a(f"buffer_store_dwordx2 {vr(B + 2 * j, 2)}, v{vo2}, s[{S_Y}:{S_Y + 3}], s{S_T2} offen offset:{j * 8}")
    a.label(end)
    a("s_endpgm")
    a.end_kernel(name, 88)
    return (name, 512, 256, 0)
```

```python
from asmlib import *
from layout import *

S_A, S_W, S_O, S_X, S_Y = 4, 8, 12, 16, 40
S_WAVE, S_WM, S_WN, S_GK, S_M0, S_N0, S_SPLIT = 20, 21, 22, 23, 24, 25, 26
S_OFFA, S_OFFW, S_MA, S_MW, S_CNT = 27, 28, 29, 30, 31
S_T0, S_T1, S_T2, S_T3 = 32, 33, 34, 35
S_KST = 54
S_P0 = 44
import os
PRO = int(os.environ.get("PRO", "4"))
ROT = int(os.environ.get("ROT", "0"))
SPEC = os.environ.get('SPEC', '0') == '1'
S_DW = 55
NOMFMA = os.environ.get('NOMFMA') == '1'
NOW = os.environ.get('NOW') == '1'
NOA = os.environ.get('NOA') == '1'
NORD = os.environ.get('NORD') == '1'


def emit_ln(a, vals, mask, va_tmp, out_pk):
    acc, mean, t, u, rinv, d = [va_tmp + i for i in range(6)]
    a(f"v_mov_b32 v{acc}, 0")
    set_exec(a, mask)
    for v in vals:
        a(f"v_add_f32 v{acc}, v{acc}, v{v}")
    a("s_mov_b64 exec, -1")
    wave_reduce_add(a, acc, 36)
    a(f"s_mov_b32 s37, 0x{f32bits(1.0 / 576):x}")
    a(f"v_mov_b32 v{mean}, s36")
    a(f"v_mul_f32 v{mean}, s37, v{mean}")
    a(f"v_mov_b32 v{acc}, 0")
    set_exec(a, mask)
    for v in vals:
        a(f"v_sub_f32 v{d}, v{v}, v{mean}")
        a(f"v_fmac_f32 v{acc}, v{d}, v{d}")
    a("s_mov_b64 exec, -1")
    wave_reduce_add(a, acc, 36)
    a(f"v_mov_b32 v{t}, s36")
    a(f"v_mul_f32 v{t}, s37, v{t}")
    a(f"v_cvt_pk_bf16_f32 v{t}, v{t}, v{mean}")
    a(f"v_and_b32 v{mean}, 0xffff0000, v{t}")
    a(f"v_lshlrev_b32 v{t}, 16, v{t}")
    a(f"v_add_f32 v{t}, 0x{f32bits(1e-5):x}, v{t}")
    a(f"v_cvt_pk_bf16_f32 v{t}, v{t}, v{t}")
    a(f"v_lshlrev_b32 v{t}, 16, v{t}")
    a(f"v_sqrt_f32 v{t}, v{t}")
    a("s_nop 0")
    a(f"v_cvt_pk_bf16_f32 v{t}, v{t}, v{t}")
    a(f"v_lshlrev_b32 v{t}, 16, v{t}")
    a(f"v_rcp_f32 v{rinv}, v{t}")
    for i in range(0, len(vals), 2):
        a(f"v_sub_f32 v{d}, v{vals[i]}, v{mean}")
        a(f"v_sub_f32 v{u}, v{vals[i + 1]}, v{mean}")
        a(f"v_cvt_pk_bf16_f32 v{d}, v{d}, v{u}")
        a(f"v_and_b32 v{u}, 0xffff0000, v{d}")
        a(f"v_lshlrev_b32 v{d}, 16, v{d}")
        a(f"v_mul_f32 v{d}, v{d}, v{rinv}")
        a(f"v_mul_f32 v{u}, v{u}, v{rinv}")
        a(f"v_cvt_pk_bf16_f32 v{out_pk[i // 2]}, v{d}, v{u}")


class Gemm:
    def __init__(self, a, tag, BM, BN, BKS, NS, GM, GN, GK, KLEN, lda, ldw, epi, w_perm=True, swap=False):
        self.a = a
        self.tag = tag
        self.BM, self.BN, self.BKS, self.NS = BM, BN, BKS, NS
        self.GM, self.GN, self.GK = GM, GN, GK
        assert GM * GN * GK == 8
        self.TM = BM // GM // 16
        self.TN = BN // GN // 16
        self.KSW = BKS // 32 // GK
        self.NST = KLEN // BKS
        assert KLEN % BKS == 0
        self.lda, self.ldw = lda, ldw
        self.epi = epi
        self.w_perm = w_perm
        self.swap = swap
        self.RB = BKS * 2
        self.WB = BN * 2
        self.NA = BM * self.RB // 1024 // 8
        if self.WB == 288:
            assert BKS == 64
            self.NW = 3
            self.WBYTES = BKS * 288
        else:
            assert self.WB == 512 and BKS == 32
            self.NW = 2
            self.WBYTES = 16 * 1056
        self.ABYTES = BM * self.RB
        self.SS = self.ABYTES + self.WBYTES
        self.LDS = self.SS * NS
        assert self.LDS <= 163840
        self.spec = SPEC
        if self.spec:
            assert self.WB == 512
            self.NA *= 2
            self.NW *= 2
        self.D = self.NA + self.NW

    def alloc(self, va):
        self.vL = va.get()
        self.vT = va.get(8)
        self.vA_off = [va.get() for _ in range(self.NA)]
        self.vW_off = [va.get() for _ in range(self.NW)]
        nb = (self.LDS + 65535) // 65536
        self.nb = nb
        nka = self.KSW if self.RB == 128 else 1
        self.vA_rd = [[va.get() for _ in range(nb)] for _ in range(nka)]
        self.vW_rd = [va.get() for _ in range(nb)]
        self.fa = [[va.get(4, 4) for _ in range(self.TM)] for _ in range(2)]
        self.fw = [[va.get(4, 4) for _ in range(self.TN)] for _ in range(2)]
        self.acc = [[va.get(4, 4) for _ in range(self.TM)] for _ in range(self.TN)]

    def setup_addrs(self):
        a = self.a
        L, T = self.vL, self.vT
        if self.spec:
            a(f"s_and_b32 s{S_DW}, s{S_WAVE}, 3")
        else:
            a(f"s_mov_b32 s{S_DW}, s{S_WAVE}")
        RB = self.RB
        CPR = RB // 16
        RPI = 1024 // RB
        cs = {4: 2, 8: 3}[CPR]
        for ia in range(self.NA):
            a(f"s_mul_i32 s{S_T0}, s{S_DW}, {self.NA * RPI}")
            a(f"s_add_u32 s{S_T0}, s{S_T0}, {ia * RPI}")
            a(f"v_lshrrev_b32 v{T}, {cs}, v{L}")
            a(f"v_add_u32 v{T}, s{S_T0}, v{T}")
            if RB == 128:
                a(f"v_bfe_u32 v{T + 1}, v{T}, 1, 3")
            else:
                a(f"v_bfe_u32 v{T + 1}, v{T}, 3, 1")
                a(f"v_mul_u32_u24 v{T + 1}, 3, v{T + 1}")
            a(f"v_and_b32 v{T + 2}, {CPR - 1}, v{L}")
            a(f"v_xor_b32 v{T + 2}, v{T + 2}, v{T + 1}")
            a(f"v_lshlrev_b32 v{T + 2}, 4, v{T + 2}")
            a(f"v_add_u32 v{T}, s{S_M0}, v{T}")
            a(f"s_mov_b32 s{S_T1}, {self.lda}")
            a(f"v_mul_lo_u32 v{T}, v{T}, s{S_T1}")
            a(f"v_add_u32 v{self.vA_off[ia]}, v{T}, v{T + 2}")
        a(f"s_mul_i32 s{S_MA}, s{S_DW}, {self.NA * 1024}")
        a(f"s_lshl_b32 s{S_T2}, s{S_N0}, 1")
        a(f"s_mov_b32 s{S_T1}, {self.ldw}")
        if self.WB == 288:
            for i in range(3):
                a(f"v_add_u32 v{T}, {64 * i}, v{L}")
                a(f"v_mul_u32_u24 v{T + 1}, 57, v{T}")
                a(f"v_lshrrev_b32 v{T + 1}, 10, v{T + 1}")
                a(f"v_mul_u32_u24 v{T + 2}, 18, v{T + 1}")
                a(f"v_sub_u32 v{T + 2}, v{T}, v{T + 2}")
                a(f"s_lshl_b32 s{S_T0}, s{S_DW}, 3")
                a(f"v_add_u32 v{T + 1}, s{S_T0}, v{T + 1}")
                if self.w_perm:
                    a(f"v_bfe_u32 v{T + 3}, v{T + 1}, 2, 1")
                    a(f"v_bfe_u32 v{T + 4}, v{T + 1}, 3, 1")
                    a(f"v_and_b32 v{T + 1}, 0xfffffff3, v{T + 1}")
                    a(f"v_lshl_or_b32 v{T + 1}, v{T + 3}, 3, v{T + 1}")
                    a(f"v_lshl_or_b32 v{T + 1}, v{T + 4}, 2, v{T + 1}")
                a(f"v_mul_lo_u32 v{T + 1}, v{T + 1}, s{S_T1}")
                a(f"v_lshl_add_u32 v{T + 1}, v{T + 2}, 4, v{T + 1}")
                a(f"v_add_u32 v{self.vW_off[i]}, s{S_T2}, v{T + 1}")
            a(f"s_mul_i32 s{S_MW}, s{S_DW}, {144 * 16}")
        else:
            for i in range(self.NW):
                a(f"s_mul_i32 s{S_T0}, s{S_DW}, {self.NW}")
                a(f"s_add_u32 s{S_T0}, s{S_T0}, {i}")
                a(f"s_and_b32 s{S_T3}, s{S_T0}, 3")
                a(f"s_lshr_b32 s{S_T0}, s{S_T0}, 2")
                a(f"s_lshl_b32 s{S_T0}, s{S_T0}, 3")
                a(f"s_add_u32 s{S_T0}, s{S_T0}, s{S_T3}")
                a(f"v_lshrrev_b32 v{T}, 5, v{L}")
                a(f"v_lshlrev_b32 v{T}, 2, v{T}")
                a(f"v_add_u32 v{T}, s{S_T0}, v{T}")
                a(f"v_mul_lo_u32 v{T}, v{T}, s{S_T1}")
                a(f"v_and_b32 v{T + 1}, 31, v{L}")
                a(f"v_lshl_add_u32 v{T}, v{T + 1}, 4, v{T}")
                a(f"v_add_u32 v{self.vW_off[i]}, s{S_T2}, v{T}")
            a(f"s_mul_i32 s{S_MW}, s{S_DW}, {self.NW * 1056}")
        a(f"s_mul_i32 s{S_T0}, s{S_WM}, {self.TM * 16}")
        a(f"v_and_b32 v{T}, 15, v{L}")
        a(f"v_add_u32 v{T}, s{S_T0}, v{T}")
        a(f"v_lshrrev_b32 v{T + 1}, 4, v{L}")
        r0 = self.vA_rd[0][0]
        if RB == 128:
            if self.GK == 2:
                a(f"s_lshl_b32 s{S_T1}, s{S_GK}, 2")
                a(f"v_add_u32 v{T + 1}, s{S_T1}, v{T + 1}")
            a(f"v_bfe_u32 v{T + 2}, v{T}, 1, 3")
            a(f"v_xor_b32 v{T + 1}, v{T + 1}, v{T + 2}")
            a(f"v_lshlrev_b32 v{T + 1}, 4, v{T + 1}")
            a(f"v_lshl_add_u32 v{r0}, v{T}, 7, v{T + 1}")
            if len(self.vA_rd) == 2:
                a(f"v_xor_b32 v{self.vA_rd[1][0]}, 64, v{r0}")
        else:
            a(f"v_bfe_u32 v{T + 2}, v{T}, 3, 1")
            a(f"v_mul_u32_u24 v{T + 2}, 3, v{T + 2}")
            a(f"v_xor_b32 v{T + 1}, v{T + 1}, v{T + 2}")
            a(f"v_lshlrev_b32 v{T + 1}, 4, v{T + 1}")
            a(f"v_lshl_add_u32 v{r0}, v{T}, 6, v{T + 1}")
        for rs in self.vA_rd:
            for k in range(1, self.nb):
                a(f"v_add_u32 v{rs[k]}, 0x{65536 * k:x}, v{rs[0]}")
        w0 = self.vW_rd[0]
        a(f"v_lshrrev_b32 v{T}, 4, v{L}")
        a(f"v_bfe_u32 v{T + 1}, v{L}, 2, 2")
        a(f"v_and_b32 v{T + 2}, 3, v{L}")
        if self.WB == 288:
            a(f"v_lshrrev_b32 v{T + 3}, 1, v{T}")
            a(f"v_lshl_add_u32 v{T + 1}, v{T + 3}, 4, v{T + 1}")
            a(f"v_and_b32 v{T + 3}, 1, v{T}")
            a(f"v_lshl_add_u32 v{T + 1}, v{T + 3}, 2, v{T + 1}")
            a(f"v_mul_u32_u24 v{T + 1}, 288, v{T + 1}")
            a(f"v_lshl_add_u32 v{w0}, v{T + 2}, 3, v{T + 1}")
            if self.GK == 2:
                a(f"s_mul_i32 s{S_T1}, s{S_GK}, {32 * 288}")
                a(f"v_add_u32 v{w0}, s{S_T1}, v{w0}")
        else:
            a(f"v_lshl_add_u32 v{T + 1}, v{T}, 2, v{T + 1}")
            a(f"v_mul_u32_u24 v{T + 1}, 1056, v{T + 1}")
            a(f"v_lshl_add_u32 v{w0}, v{T + 2}, 3, v{T + 1}")
        a(f"s_mul_i32 s{S_T1}, s{S_WN}, {self.TN * 32}")
        a(f"v_add_u32 v{w0}, s{S_T1}, v{w0}")
        for k in range(1, self.nb):
            a(f"v_add_u32 v{self.vW_rd[k]}, 0x{65536 * k:x}, v{w0}")

    def rotate(self, cm, cn):
        a = self.a
        cm, cn = cm * ROT, cn * ROT
        a(f"s_lshr_b32 s{S_T0}, s2, 3")
        a(f"s_and_b32 s{S_T1}, s{S_T0}, 3")
        a(f"s_lshr_b32 s{S_T0}, s{S_T0}, 2")
        a(f"s_mul_i32 s{S_T0}, s{S_T0}, {cm}")
        a(f"s_mul_i32 s{S_T1}, s{S_T1}, {cn}")
        a(f"s_add_u32 s{S_KST}, s{S_T0}, s{S_T1}")
        a(f"s_cmp_ge_u32 s{S_KST}, {self.NST}")
        a(f"s_cselect_b32 s{S_T0}, {self.NST}, 0")
        a(f"s_sub_u32 s{S_KST}, s{S_KST}, s{S_T0}")
        a(f"s_mul_i32 s{S_T0}, s{S_KST}, {self.BKS * 2}")
        a(f"s_add_u32 s{S_OFFA}, s{S_OFFA}, s{S_T0}")
        a(f"s_mul_i32 s{S_T0}, s{S_KST}, 0x{self.BKS * self.ldw:x}")
        a(f"s_add_u32 s{S_OFFW}, s{S_OFFW}, s{S_T0}")

    def zero_acc(self):
        for row in self.acc:
            for r in row:
                for j in range(4):
                    self.a(f"v_mov_b32 v{r + j}, 0")

    def dma_items(self, buf):
        base = buf * self.SS
        it = []
        for ia in range(self.NA):
            it.append([f"s_add_u32 m0, s{S_MA}, 0x{base + ia * 1024:x}", "s_nop 0",
                       f"buffer_load_dwordx4 v{self.vA_off[ia]}, s[{S_A}:{S_A + 3}], s{S_OFFA} offen lds"])
        wb = base + self.ABYTES
        for i in range(self.NW):
            step = 1024 if self.WB == 288 else 1056
            g = [f"s_add_u32 m0, s{S_MW}, 0x{wb + i * step:x}"]
            if self.WB == 288 and i == 2:
                g += ["s_mov_b64 exec, 0xffff",
                      f"buffer_load_dwordx4 v{self.vW_off[i]}, s[{S_W}:{S_W + 3}], s{S_OFFW} offen lds",
                      "s_mov_b64 exec, -1"]
            else:
                g += ["s_nop 0", f"buffer_load_dwordx4 v{self.vW_off[i]}, s[{S_W}:{S_W + 3}], s{S_OFFW} offen lds"]
            it.append(g)
        if NOA:
            it = [[x for x in gg if not (x.startswith("buffer_load") and f"s[{S_A}:" in x)] for gg in it]
        if NOW:
            it = [[x for x in gg if not (x.startswith("buffer_load") and f"s[{S_W}:" in x)] for gg in it]
        it.append([f"s_add_u32 s{S_OFFA}, s{S_OFFA}, {self.BKS * 2}",
                   f"s_add_u32 s{S_OFFW}, s{S_OFFW}, 0x{self.BKS * self.ldw:x}",
                   f"s_add_u32 s{S_KST}, s{S_KST}, 1",
                   f"s_cmp_eq_u32 s{S_KST}, {self.NST}",
                   f"s_cselect_b32 s{S_T2}, 0x{self.NST * self.BKS * 2:x}, 0",
                   f"s_cselect_b32 s{S_T3}, 0x{self.NST * self.BKS * self.ldw:x}, 0",
                   f"s_cselect_b32 s{S_KST}, 0, s{S_KST}",
                   f"s_sub_u32 s{S_OFFA}, s{S_OFFA}, s{S_T2}",
                   f"s_sub_u32 s{S_OFFW}, s{S_OFFW}, s{S_T3}"])
        return it

    def rd(self, regs, off):
        return regs[off >> 16], off & 0xffff

    def frag_reads(self, buf, ks, fb):
        base = buf * self.SS
        out = []
        ka = ks if len(self.vA_rd) == 2 else 0
        ksoff = ks * 32 * 288 if (self.WB == 288 and self.GK == 1) else 0
        sec = 8 * 288 if self.WB == 288 else 512
        for tn in range(self.TN):
            o = base + self.ABYTES + ksoff + tn * 32
            r, im = self.rd(self.vW_rd, o)
            out.append(f"ds_read_b64_tr_b16 {vr(self.fw[fb][tn], 2)}, v{r} offset:{im}")
            r, im = self.rd(self.vW_rd, o + sec)
            out.append(f"ds_read_b64_tr_b16 {vr(self.fw[fb][tn] + 2, 2)}, v{r} offset:{im}")
            if tn == 0:
                for tm in range(self.TM):
                    r, im = self.rd(self.vA_rd[ka], base + tm * 16 * self.RB)
                    out.append(f"ds_read_b128 {vr(self.fa[fb][tm], 4)}, v{r} offset:{im}")
        if NORD:
            out = ["s_nop 0"] * len(out)
        return out

    def mfmas(self, fb):
        out = []
        for tn in range(self.TN):
            for tm in range(self.TM):
                c = vr(self.acc[tn][tm], 4)
                w = vr(self.fw[fb][tn], 4)
                x = vr(self.fa[fb][tm], 4)
                if self.swap:
                    out.append(f"v_mfma_f32_16x16x32_bf16 {c}, {x}, {w}, {c}")
                else:
                    out.append(f"v_mfma_f32_16x16x32_bf16 {c}, {w}, {x}, {c}")
        if NOMFMA:
            out = ["s_nop 0"] * len(out)
        return out

    def stage(self, s_buf, par, issue, vm, has_next):
        a = self.a
        for ks in range(self.KSW):
            last = ks == self.KSW - 1
            a("s_waitcnt lgkmcnt(0)")
            fill = []
            if last:
                if has_next and self.spec:
                    ln, lj = a.newlabel("nl"), a.newlabel("jn")
                    a(f"s_cmp_lt_u32 s{S_WAVE}, 4")
                    a(f"s_cbranch_scc1 {ln}")
                    a(f"s_waitcnt vmcnt({vm})")
                    a("s_barrier")
                    if issue:
                        for gg in self.dma_items(s_buf):
                            a.many(gg)
                    a(f"s_branch {lj}")
                    a.label(ln)
                    a("s_barrier")
                    a.label(lj)
                    fill += self.frag_reads((s_buf + 1) % self.NS, 0, par ^ 1)
                elif has_next:
                    a(f"s_waitcnt vmcnt({vm})")
                    a("s_barrier")
                    fill += self.frag_reads((s_buf + 1) % self.NS, 0, par ^ 1)
                    if issue:
                        d = self.dma_items(s_buf)
                        f2 = []
                        step = max(1, len(fill) // len(d))
                        di = 0
                        for i, f in enumerate(fill):
                            f2.append(f)
                            if i % step == step - 1 and di < len(d):
                                f2.append(d[di]); di += 1
                        f2 += d[di:]
                        fill = f2
            else:
                fill += self.frag_reads(s_buf, ks + 1, par ^ 1)
            interleave(a, self.mfmas(par), fill)
            par ^= 1
        return par

    def mainloop(self):
        a = self.a
        NS, NST, D = self.NS, self.NST, self.D
        stamp(a, 1)
        if self.spec:
            ln = a.newlabel("nl")
            a(f"s_cmp_lt_u32 s{S_WAVE}, 4")
            a(f"s_cbranch_scc1 {ln}")
            a(f"s_waitcnt vmcnt({(PRO - 1) * D})")
            a.label(ln)
        else:
            a(f"s_waitcnt vmcnt({(PRO - 1) * D})")
        a("s_barrier")
        stamp(a, 2)
        a.many(self.frag_reads(0, 0, 0))
        for b in range(PRO, NS):
            for gg in self.dma_items(b):
                a.many(gg)
        par = 0
        nmain = NST - NS
        r = nmain % NS
        s = 0
        for _ in range(r):
            par = self.stage(s % NS, par, True, (NS - 2) * D, True)
            s += 1
        trips = (nmain - r) // NS
        if trips > 0:
            assert (NS * self.KSW) % 2 == 0
            lab = a.newlabel(self.tag + "_loop")
            a(f"s_mov_b32 s{S_CNT}, {trips}")
            a.label(lab)
            for i in range(NS):
                par = self.stage((s + i) % NS, par, True, (NS - 2) * D, True)
            a(f"s_sub_u32 s{S_CNT}, s{S_CNT}, 1")
            a(f"s_cmp_lg_u32 s{S_CNT}, 0")
            a(f"s_cbranch_scc1 {lab}")
            s += trips * NS
        while s < NST:
            vm = (min(s + NS - 1, NST - 1) - (s + 1)) * D if s + 1 < NST else 0
            par = self.stage(s % NS, par, False, vm, s + 1 < NST)
            s += 1
        a("s_nop 15")
        stamp(a, 3)

    def prologue_dma(self):
        for b in range(PRO):
            for g in self.dma_items(b):
                self.a.many(g)


def common_head(a, nwg, endlab):
    a(f"s_cmp_ge_u32 s2, {nwg}")
    a(f"s_cbranch_scc1 {endlab}")
    stamp(a, 0)


def wave_ids(a, g):
    a(f"v_lshrrev_b32 v{g.vT}, 6, v0")
    a(f"v_and_b32 v{g.vL}, 63, v0")
    a("s_nop 0")
    a(f"v_readfirstlane_b32 s{S_WAVE}, v{g.vT}")
    a("s_nop 3")
    gm = g.GM.bit_length() - 1
    gn = g.GN.bit_length() - 1
    a(f"s_and_b32 s{S_WM}, s{S_WAVE}, {g.GM - 1}")
    a(f"s_lshr_b32 s{S_T0}, s{S_WAVE}, {gm}")
    a(f"s_and_b32 s{S_WN}, s{S_T0}, {g.GN - 1}")
    a(f"s_lshr_b32 s{S_GK}, s{S_T0}, {gn}")


def gen_kv(a):
    name = "kv_proj_kernel"
    a.begin_kernel(name)
    end = "L_kv_end"
    common_head(a, 256, end)
    gK = Gemm(a, "kvk", 256, 256, 32, 4, 4, 2, 1, 512, 1024, 8192, "K", swap=False)
    gV = Gemm(a, "kvv", 256, 256, 32, 4, 4, 2, 1, 512, 1024, 8192, "V", swap=True)
    va = VAlloc(1)
    gK.alloc(va)
    va2 = VAlloc(1)
    gV.alloc(va2)
    g = gK
    a(f"s_load_dwordx2 s[{S_P0}:{S_P0 + 1}], s[0:1], {KARG['ckv']}")
    a(f"s_load_dwordx4 s[{S_P0 + 4}:{S_P0 + 7}], s[0:1], {KARG['wuk']}")
    a(f"s_load_dwordx2 s[{S_P0 + 2}:{S_P0 + 3}], s[0:1], {KARG['ws']}")
    a(f"s_load_dwordx2 s[52:53], s[0:1], {KARG['x']}")
    wave_ids(a, g)
    a(f"s_and_b32 s{S_T0}, s2, 7")
    a(f"s_lshr_b32 s{S_T1}, s2, 3")
    a(f"s_and_b32 s{S_T2}, s{S_T1}, 3")
    a(f"s_lshl_b32 s{S_T0}, s{S_T0}, 2")
    a(f"s_add_u32 s{S_T0}, s{S_T0}, s{S_T2}")
    a(f"s_lshr_b32 s{S_T1}, s{S_T1}, 2")
    a(f"s_lshl_b32 s{S_M0}, s{S_T1}, 8")
    a(f"s_and_b32 s{S_T2}, s{S_T0}, 15")
    a(f"s_lshl_b32 s{S_N0}, s{S_T2}, 8")
    a(f"s_lshr_b32 s{S_SPLIT}, s{S_T0}, 4")
    a("s_waitcnt lgkmcnt(0)")
    srd_from(a, S_A, S_P0, 0, 2048 * 1024)
    a(f"s_cmp_eq_u32 s{S_SPLIT}, 0")
    a(f"s_cselect_b32 s{S_W}, s{S_P0 + 4}, s{S_P0 + 6}")
    a(f"s_cselect_b32 s{S_W + 1}, s{S_P0 + 5}, s{S_P0 + 7}")
    a(f"s_mov_b32 s{S_W + 2}, 0x{512 * 8192:x}")
    a(f"s_mov_b32 s{S_W + 3}, 0x00020000")
    a(f"s_mov_b32 s{S_T1}, 0x{WS_V:x}")
    a(f"s_cselect_b32 s{S_T0}, 0x{WS_K:x}, s{S_T1}")
    a(f"s_add_u32 s{S_O}, s{S_P0 + 2}, s{S_T0}")
    a(f"s_addc_u32 s{S_O + 1}, s{S_P0 + 3}, 0")
    a(f"s_mov_b32 s{S_O + 2}, 0x{16 * MB:x}")
    a(f"s_mov_b32 s{S_O + 3}, 0x00020000")
    srd_from(a, S_X, 52, 0, 2048 * 1152)
    srd_from(a, S_Y, S_P0 + 2, WS_XN, 2048 * 1152)
    a(f"s_mov_b32 s{S_OFFA}, 0")
    a(f"s_mov_b32 s{S_OFFW}, 0")
    g.rotate(2, 5)
    if os.environ.get("TOUCH", "0") == "1":
        vd = max(va.hi, va2.hi)
        a(f"s_lshr_b32 s{S_T0}, s2, 3")
        a(f"s_lshl_b32 s{S_T1}, s{S_T0}, 3")
        a(f"s_add_u32 s{S_T1}, s{S_T1}, s{S_WAVE}")
        a(f"s_lshl_b32 s{S_T1}, s{S_T1}, 13")
        a(f"v_lshlrev_b32 v{g.vT}, 7, v{g.vL}")
        a(f"buffer_load_dword v{vd}, v{g.vT}, s[{S_A}:{S_A + 3}], s{S_T1} offen")
        a(f"s_and_b32 s{S_T1}, s{S_WAVE}, 3")
        a(f"s_lshl_b32 s{S_T1}, s{S_T1}, 2")
        a(f"s_lshl_b32 s{S_T0}, s{S_T0}, 4")
        a(f"s_add_u32 s{S_T0}, s{S_T0}, s{S_T1}")
        a(f"s_lshl_b32 s{S_T0}, s{S_T0}, 13")
        a(f"s_and_b32 s{S_T1}, s2, 3")
        a(f"s_lshl_b32 s{S_T1}, s{S_T1}, 11")
        a(f"s_add_u32 s{S_T0}, s{S_T0}, s{S_T1}")
        a(f"v_lshrrev_b32 v{g.vT}, 4, v{g.vL}")
        a(f"v_lshlrev_b32 v{g.vT}, 13, v{g.vT}")
        a(f"v_and_b32 v{g.vT + 1}, 15, v{g.vL}")
        a(f"v_lshl_add_u32 v{g.vT}, v{g.vT + 1}, 7, v{g.vT}")
        a(f"buffer_load_dword v{vd}, v{g.vT}, s[{S_W}:{S_W + 3}], s{S_T0} offen")
    ln_base = g.fa[0][0]
    raw = ln_base
    vals = [ln_base + 8 + i for i in range(16)]
    tmp = ln_base + 24
    voff = ln_base + 30
    a(f"s_lshl_b32 s{S_T0}, s2, 3")
    a(f"s_add_u32 s{S_T0}, s{S_T0}, s{S_WAVE}")
    a(f"s_mul_i32 s{S_T3}, s{S_T0}, 1152")
    a(f"v_lshlrev_b32 v{voff}, 5, v{g.vL}")
    mask = (1 << 36) - 1
    set_exec(a, mask)
    a(f"buffer_load_dwordx4 {vr(raw, 4)}, v{voff}, s[{S_X}:{S_X + 3}], s{S_T3} offen")
    a(f"buffer_load_dwordx4 {vr(raw + 4, 4)}, v{voff}, s[{S_X}:{S_X + 3}], s{S_T3} offen offset:16")
    a("s_mov_b64 exec, -1")
    a(f"s_lshr_b32 s38, s{S_T0}, 5")
    a(f"s_mul_i32 s38, s38, 36864")
    a(f"s_and_b32 s39, s{S_T0}, 31")
    a(f"s_lshl_b32 s39, s39, 4")
    a(f"s_add_u32 s38, s38, s39")
    if SPEC:
        g.setup_addrs()
        vd = max(va.hi, va2.hi)
        va.get()
        a(f"s_cmp_lt_u32 s{S_WAVE}, 4")
        a("s_cbranch_scc1 L_kv_nl")
        g.prologue_dma()
        a(f"s_waitcnt vmcnt({PRO * g.D})")
        a("s_branch L_kv_jn")
        a.label("L_kv_nl")
        a("s_waitcnt vmcnt(0)")
        a.label("L_kv_jn")
    else:
        g.setup_addrs()
        g.prologue_dma()
        if os.environ.get('PREF', '1') == '1':
            vd = max(va.hi, va2.hi)
            va.get()
            a(f"s_load_dwordx2 s[56:57], s[0:1], {KARG['wq']}")
            a(f"s_lshl_b32 s{S_T0}, s2, 3")
            a(f"s_add_u32 s{S_T0}, s{S_T0}, s{S_WAVE}")
            a(f"s_lshl_b32 s{S_T0}, s{S_T0}, 13")
            a(f"v_lshlrev_b32 v{g.vT}, 7, v{g.vL}")
            a("s_waitcnt lgkmcnt(0)")
            srd_from(a, S_X, 56, 0, 576 * 8192)
            a(f"buffer_load_dword v{vd}, v{g.vT}, s[{S_X}:{S_X + 3}], s{S_T0} offen")
            if os.environ.get("CPREF", "0") == "1":
                a("s_getpc_b64 s[56:57]")
                a.label("L_kv_pc")
                a("s_add_u32 s56, s56, attn_kernel-L_kv_pc")
                a("s_addc_u32 s57, s57, 0")
                a(f"s_and_b32 s{S_T1}, s2, 15")
                a(f"s_lshl_b32 s{S_T1}, s{S_T1}, 13")
                a(f"v_add_u32 v{g.vT + 1}, s{S_T1}, v{g.vT}")
                a(f"s_mov_b32 s{S_T1}, L_text_end-attn_kernel-4")
                a(f"v_min_u32 v{g.vT + 1}, s{S_T1}, v{g.vT + 1}")
                a(f"global_load_dword v{vd}, v{g.vT + 1}, s[56:57]")
                a(f"s_waitcnt vmcnt({PRO * g.D + 2})")
            else:
                a(f"s_waitcnt vmcnt({PRO * g.D + 1})")
        else:
            a(f"s_waitcnt vmcnt({PRO * g.D})")
    for i in range(8):
        a(f"v_lshlrev_b32 v{vals[2 * i]}, 16, v{raw + i}")
        a(f"v_and_b32 v{vals[2 * i + 1]}, 0xffff0000, v{raw + i}")
    emit_ln(a, vals, mask, tmp, [raw + i for i in range(8)])
    set_exec(a, mask)
    a(f"v_lshlrev_b32 v{voff}, 10, v{g.vL}")
    a(f"buffer_store_dwordx4 {vr(raw, 4)}, v{voff}, s[{S_Y}:{S_Y + 3}], s38 offen")
    a(f"buffer_store_dwordx4 {vr(raw + 4, 4)}, v{voff}, s[{S_Y}:{S_Y + 3}], s38 offen offset:512")
    a("s_mov_b64 exec, -1")
    a("s_nop 1")
    if SPEC:
        a(f"s_cmp_ge_u32 s{S_WAVE}, 4")
        a("s_cbranch_scc1 L_kv_nt")
        a(f"s_load_dwordx2 s[56:57], s[0:1], {KARG['wq']}")
        a(f"v_lshlrev_b32 v{g.vT}, 7, v{g.vL}")
        a(f"s_lshr_b32 s{S_T0}, s2, 3")
        a(f"s_lshl_b32 s{S_T1}, s{S_T0}, 3")
        a(f"s_lshl_b32 s{S_T2}, s{S_WAVE}, 1")
        a(f"s_add_u32 s{S_T1}, s{S_T1}, s{S_T2}")
        a(f"s_lshl_b32 s{S_T1}, s{S_T1}, 13")
        a(f"s_lshl_b32 s{S_T2}, s{S_WAVE}, 2")
        a(f"s_lshl_b32 s{S_T0}, s{S_T0}, 4")
        a(f"s_add_u32 s{S_T0}, s{S_T0}, s{S_T2}")
        a(f"s_lshl_b32 s{S_T0}, s{S_T0}, 13")
        a(f"s_and_b32 s{S_T2}, s2, 3")
        a(f"s_lshl_b32 s{S_T2}, s{S_T2}, 11")
        a(f"s_add_u32 s{S_T0}, s{S_T0}, s{S_T2}")
        a(f"v_lshrrev_b32 v{g.vT + 1}, 4, v{g.vL}")
        a(f"v_lshlrev_b32 v{g.vT + 1}, 13, v{g.vT + 1}")
        a(f"v_and_b32 v{g.vT + 2}, 15, v{g.vL}")
        a(f"v_lshl_add_u32 v{g.vT + 1}, v{g.vT + 2}, 7, v{g.vT + 1}")
        a(f"buffer_load_dword v{vd}, v{g.vT + 1}, s[{S_W}:{S_W + 3}], s{S_T0} offen")
        a(f"buffer_load_dword v{vd}, v{g.vT}, s[{S_A}:{S_A + 3}], s{S_T1} offen")
        a(f"s_add_u32 s{S_T1}, s{S_T1}, 0x2000")
        a(f"buffer_load_dword v{vd}, v{g.vT}, s[{S_A}:{S_A + 3}], s{S_T1} offen")
        a(f"s_lshl_b32 s{S_T0}, s2, 2")
        a(f"s_add_u32 s{S_T0}, s{S_T0}, s{S_WAVE}")
        a(f"s_lshl_b32 s{S_T0}, s{S_T0}, 13")
        a("s_waitcnt lgkmcnt(0)")
        srd_from(a, S_X, 56, 0, 576 * 8192)
        a(f"buffer_load_dword v{vd}, v{g.vT}, s[{S_X}:{S_X + 3}], s{S_T0} offen")
        a.label("L_kv_nt")
    g.zero_acc()
    a(f"s_cmp_eq_u32 s{S_SPLIT}, 0")
    a("s_cbranch_scc0 L_kv_v")
    for gg in (gK, gV):
        if gg is gV:
            a.label("L_kv_v")
        gg.mainloop()
        T = gg.vT
        L = gg.vL
        a(f"s_lshr_b32 s{S_T0}, s{S_N0}, 7")
        a(f"s_add_u32 s{S_T0}, s{S_T0}, s{S_WN}")
        a(f"s_lshl_b32 s{S_T0}, s{S_T0}, 19")
        a(f"s_lshr_b32 s{S_T1}, s{S_M0}, 6")
        a(f"s_add_u32 s{S_T1}, s{S_T1}, s{S_WM}")
        a(f"s_lshl_b32 s{S_T1}, s{S_T1}, 14")
        a(f"s_add_u32 s{S_T0}, s{S_T0}, s{S_T1}")
        cst = 1024 if gg is gK else 2048
        a(f"v_bfe_u32 v{T}, v{L}, 4, 1")
        a(f"v_mul_u32_u24 v{T}, {cst}, v{T}")
        a(f"v_and_b32 v{T + 1}, 15, v{L}")
        a(f"v_lshl_add_u32 v{T}, v{T + 1}, 4, v{T}")
        a(f"v_lshrrev_b32 v{T + 1}, 5, v{L}")
        a(f"v_lshl_add_u32 v{T}, v{T + 1}, 8, v{T}")
        if gg is gK:
            prs = [((tn, tm), (tn, tm + 1), tn * 2048, tm * 256) for tn in range(gg.TN) for tm in range(0, gg.TM, 2)]
        else:
            prs = [((tn, tm), (tn + 1, tm), tm * 4096, tn * 256) for tm in range(gg.TM) for tn in range(0, gg.TN, 2)]
        stg = [gg.fa[0][0], gg.fa[0][1], gg.fa[0][2], gg.fa[0][3]]
        for k, (X, Y, so, im) in enumerate(prs):
            p = stg[k & 3]
            cx, cy = gg.acc[X[0]][X[1]], gg.acc[Y[0]][Y[1]]
            a(f"v_cvt_pk_bf16_f32 v{p}, v{cx}, v{cx + 1}")
            a(f"v_cvt_pk_bf16_f32 v{p + 1}, v{cx + 2}, v{cx + 3}")
            a(f"v_cvt_pk_bf16_f32 v{p + 2}, v{cy}, v{cy + 1}")
            a(f"v_cvt_pk_bf16_f32 v{p + 3}, v{cy + 2}, v{cy + 3}")
            a(f"s_add_u32 s{S_T1}, s{S_T0}, {so}")
            a("s_nop 0")
            a(f"v_permlane32_swap_b32 v{p}, v{p + 2}")
            a(f"v_permlane32_swap_b32 v{p + 1}, v{p + 3}")
            a(f"buffer_store_dwordx4 {vr(p, 4)}, v{T}, s[{S_O}:{S_O + 3}], s{S_T1} offen offset:{im}")
        stamp(a, 4)
        stamp_dump(a, 5, 0, T, S_WAVE)
        a("s_endpgm")
    a.label(end)
    a("s_endpgm")
    a.end_kernel(name, max(va.hi, va2.hi))
    return (name, 256, 512, gK.LDS)


def gen_splitk(a, name, act_off, act_ld, wkey, klen, w_perm, out_off):
    a.begin_kernel(name)
    end = f"L_{name}_end"
    common_head(a, 256, end)
    g = Gemm(a, name[:4], 128, 144, 64, 4, 4, 1, 2, klen, act_ld, 1152, "P", w_perm=w_perm)
    va = VAlloc(1)
    g.alloc(va)
    a(f"s_load_dwordx2 s[{S_P0}:{S_P0 + 1}], s[0:1], {KARG[wkey]}")
    a(f"s_load_dwordx2 s[{S_P0 + 2}:{S_P0 + 3}], s[0:1], {KARG['ws']}")
    wave_ids(a, g)
    a(f"s_and_b32 s{S_SPLIT}, s2, 3")
    a(f"s_bfe_u32 s{S_T0}, s2, 0x10002")
    a(f"s_lshr_b32 s{S_T1}, s2, 3")
    a(f"s_and_b32 s{S_T2}, s{S_T1}, 3")
    a(f"s_mul_i32 s{S_N0}, s{S_T2}, 144")
    a(f"s_lshr_b32 s{S_T1}, s{S_T1}, 2")
    a(f"s_lshl_b32 s{S_T0}, s{S_T0}, 3")
    a(f"s_add_u32 s{S_T1}, s{S_T1}, s{S_T0}")
    a(f"s_lshl_b32 s{S_M0}, s{S_T1}, 7")
    a("s_waitcnt lgkmcnt(0)")
    srd_from(a, S_A, S_P0 + 2, act_off, 2048 * act_ld)
    srd_from(a, S_W, S_P0, 0, klen * 4 * 1152)
    srd_from(a, S_O, S_P0 + 2, out_off, 4 * 2048 * 2304)
    a(f"s_mul_i32 s{S_OFFA}, s{S_SPLIT}, {klen * 2}")
    a(f"s_mul_i32 s{S_OFFW}, s{S_SPLIT}, {klen * 1152}")
    g.rotate(2, 5)
    g.setup_addrs()
    g.prologue_dma()
    g.zero_acc()
    g.mainloop()
    T, L = g.vT, g.vL
    a("s_barrier")
    a(f"s_mul_i32 s{S_T0}, s{S_WM}, 18432")
    a(f"v_lshlrev_b32 v{T}, 4, v{L}")
    a(f"v_add_u32 v{T}, s{S_T0}, v{T}")
    a(f"s_cmp_eq_u32 s{S_GK}, 0")
    a(f"s_cbranch_scc1 L_{name}_g0")
    j = 0
    for tn in range(g.TN):
        for tm in range(g.TM):
            a(f"ds_write_b128 v{T}, {vr(g.acc[tn][tm], 4)} offset:{j * 1024}")
            j += 1
    a("s_waitcnt lgkmcnt(0)")
    a("s_barrier")
    a("s_endpgm")
    a.label(f"L_{name}_g0")
    a("s_barrier")
    j = 0
    rd = []
    for tn in range(g.TN):
        for tm in range(g.TM):
            rd.append((g.acc[tn][tm], g.fw[j & 1][j >> 1] if (j >> 1) < g.TN else g.fa[j & 1][0]))
            a(f"ds_read_b128 {vr(rd[-1][1], 4)}, v{T} offset:{j * 1024}")
            j += 1
    a(f"s_mul_i32 s{S_T0}, s{S_SPLIT}, {2048 * 2304}")
    a(f"s_mul_i32 s{S_T1}, s{S_M0}, 2304")
    a(f"s_add_u32 s{S_T0}, s{S_T0}, s{S_T1}")
    a(f"s_lshl_b32 s{S_T1}, s{S_N0}, 2")
    a(f"s_add_u32 s{S_T0}, s{S_T0}, s{S_T1}")
    a(f"s_lshl_b32 s{S_T1}, s{S_WM}, 5")
    a(f"v_and_b32 v{T + 1}, 15, v{L}")
    a(f"v_add_u32 v{T + 1}, s{S_T1}, v{T + 1}")
    a(f"v_mul_u32_u24 v{T + 1}, 2304, v{T + 1}")
    a(f"v_lshrrev_b32 v{T + 2}, 4, v{L}")
    a(f"v_lshl_add_u32 v{T + 1}, v{T + 2}, 4, v{T + 1}")
    a(f"v_add_u32 v{T + 2}, {16 * 2304}, v{T + 1}")
    j = 0
    for tn in range(g.TN):
        for tm in range(g.TM):
            c, f = rd[j]
            a(f"s_waitcnt lgkmcnt({min(15, len(rd) - 1 - j)})")
            for q in range(4):
                a(f"v_add_f32 v{c + q}, v{c + q}, v{f + q}")
            a(f"buffer_store_dwordx4 {vr(c, 4)}, v{T + 1 + tm}, s[{S_O}:{S_O + 3}], s{S_T0} offen offset:{tn * 64}")
            j += 1
    stamp(a, 4)
    stamp_dump(a, 5, 2 if name.startswith("oproj") else 5, T, S_WAVE)
    a.label(end)
    a("s_endpgm")
    a.end_kernel(name, va.hi)
    return (name, 256, 512, g.LDS)


def gen_up(a):
    name = "mlp_up_kernel"
    a.begin_kernel(name)
    end = f"L_{name}_end"
    common_head(a, 256, end)
    g = Gemm(a, "up", 256, 144, 64, 3, 8, 1, 1, 576, 1152, 9216, "U", w_perm=True)
    va = VAlloc(1)
    g.alloc(va)
    bias = [va.get(2, 2) for _ in range(g.TN)]
    a(f"s_load_dwordx4 s[{S_P0 + 4}:{S_P0 + 7}], s[0:1], {KARG['w1']}")
    a(f"s_load_dwordx2 s[{S_P0 + 2}:{S_P0 + 3}], s[0:1], {KARG['ws']}")
    wave_ids(a, g)
    a(f"s_and_b32 s{S_T0}, s2, 7")
    a(f"s_lshr_b32 s{S_T1}, s2, 3")
    a(f"s_and_b32 s{S_T2}, s{S_T1}, 3")
    a(f"s_lshl_b32 s{S_T0}, s{S_T0}, 2")
    a(f"s_add_u32 s{S_T0}, s{S_T0}, s{S_T2}")
    a(f"s_lshr_b32 s{S_T1}, s{S_T1}, 2")
    a(f"s_lshl_b32 s{S_M0}, s{S_T1}, 8")
    a(f"s_mul_i32 s{S_N0}, s{S_T0}, 144")
    a("s_waitcnt lgkmcnt(0)")
    srd_from(a, S_A, S_P0 + 2, WS_HN, 2048 * 1152)
    srd_from(a, S_W, S_P0 + 4, 0, 576 * 9216)
    srd_from(a, S_O, S_P0 + 2, WS_ACT, 2048 * 9216)
    srd_from(a, S_X, S_P0 + 6, 0, 9216)
    a(f"s_mov_b32 s{S_OFFA}, 0")
    a(f"s_mov_b32 s{S_OFFW}, 0")
    g.rotate(1, 2)
    T, L = g.vT, g.vL
    a(f"v_lshrrev_b32 v{T}, 4, v{L}")
    a(f"v_lshlrev_b32 v{T}, 3, v{T}")
    a(f"s_lshl_b32 s{S_T0}, s{S_N0}, 1")
    for tn in range(g.TN):
        a(f"buffer_load_dwordx2 {vr(bias[tn], 2)}, v{T}, s[{S_X}:{S_X + 3}], s{S_T0} offen offset:{tn * 32}")
    g.setup_addrs()
    g.prologue_dma()
    g.zero_acc()
    g.mainloop()
    a(f"s_mul_i32 s{S_T0}, s{S_M0}, 9216")
    a(f"s_lshl_b32 s{S_T1}, s{S_N0}, 1")
    a(f"s_add_u32 s{S_T0}, s{S_T0}, s{S_T1}")
    a(f"s_lshl_b32 s{S_T1}, s{S_WM}, 5")
    a(f"v_and_b32 v{T}, 15, v{L}")
    a(f"v_add_u32 v{T}, s{S_T1}, v{T}")
    a(f"v_mul_u32_u24 v{T}, 9216, v{T}")
    a(f"v_lshrrev_b32 v{T + 1}, 4, v{L}")
    a(f"v_lshl_add_u32 v{T}, v{T + 1}, 3, v{T}")
    a(f"v_add_u32 v{T + 1}, {16 * 9216}, v{T}")
    bf = g.fw[0][0]
    k = 0
    for tn in range(g.TN):
        b = bias[tn]
        a(f"v_lshlrev_b32 v{bf}, 16, v{b}")
        a(f"v_and_b32 v{bf + 1}, 0xffff0000, v{b}")
        a(f"v_lshlrev_b32 v{bf + 2}, 16, v{b + 1}")
        a(f"v_and_b32 v{bf + 3}, 0xffff0000, v{b + 1}")
        for tm in range(g.TM):
            c = g.acc[tn][tm]
            p = T + 2 + 2 * (k & 1)
            k += 1
            for q in range(4):
                a(f"v_add_f32 v{c + q}, v{c + q}, v{bf + q}")
            for q in range(4):
                a(f"v_max_f32 v{c + q}, 0, v{c + q}")
            for q in range(4):
                a(f"v_mul_f32 v{c + q}, v{c + q}, v{c + q}")
            a(f"v_cvt_pk_bf16_f32 v{p}, v{c}, v{c + 1}")
            a(f"v_cvt_pk_bf16_f32 v{p + 1}, v{c + 2}, v{c + 3}")
            a(f"buffer_store_dwordx2 {vr(p, 2)}, v{T + tm}, s[{S_O}:{S_O + 3}], s{S_T0} offen offset:{tn * 32}")
    stamp(a, 4)
    stamp_dump(a, 5, 4, T, S_WAVE)
    a.label(end)
    a("s_endpgm")
    a.end_kernel(name, va.hi)
    return (name, 256, 512, g.LDS)


def gen_reduce(a, name, part_off, first):
    a.begin_kernel(name)
    end = f"L_{name}_end"
    common_head(a, 512, end)
    a(f"s_load_dwordx2 s[{S_P0 + 2}:{S_P0 + 3}], s[0:1], {KARG['ws']}")
    if first:
        a(f"s_load_dwordx2 s[{S_P0}:{S_P0 + 1}], s[0:1], {KARG['x']}")
    else:
        a(f"s_load_dwordx4 s[{S_P0 + 4}:{S_P0 + 7}], s[0:1], {KARG['b2']}")
    vL, vT = 1, 2
    a(f"v_lshrrev_b32 v{vT}, 6, v0")
    a(f"v_and_b32 v{vL}, 63, v0")
    a("s_nop 0")
    a(f"v_readfirstlane_b32 s{S_WAVE}, v{vT}")
    a("s_nop 3")
    a(f"s_lshl_b32 s{S_T0}, s2, 2")
    a(f"s_add_u32 s{S_T0}, s{S_T0}, s{S_WAVE}")
    a(f"s_mul_i32 s{S_T1}, s{S_T0}, 2304")
    a(f"s_mul_i32 s{S_T2}, s{S_T0}, 1152")
    a("s_waitcnt lgkmcnt(0)")
    srd_from(a, S_A, S_P0 + 2, part_off, 4 * 2048 * 2304)
    if first:
        srd_from(a, S_X, S_P0, 0, 2048 * 1152)
        srd_from(a, S_O, S_P0 + 2, WS_H, 2048 * 1152)
        srd_from(a, S_Y, S_P0 + 2, WS_HN, 2048 * 1152)
    else:
        srd_from(a, S_X, S_P0 + 2, WS_H, 2048 * 1152)
        srd_from(a, S_O, S_P0 + 6, 0, 2048 * 1152)
        srd_from(a, S_Y, S_P0 + 4, 0, 1152)
    vo4, vo2 = 4, 5
    a(f"v_mul_u32_u24 v{vo4}, 48, v{vL}")
    a(f"v_mul_u32_u24 v{vo2}, 24, v{vL}")
    P = 8
    X = 56
    B = 62
    V = 68
    TM = 80
    mask = (1 << 48) - 1
    set_exec(a, mask)
    for s in range(4):
        if s:
            a(f"s_add_u32 s{S_T1}, s{S_T1}, {2048 * 2304}")
        for j in range(3):
            a(f"buffer_load_dwordx4 {vr(P + s * 12 + j * 4, 4)}, v{vo4}, s[{S_A}:{S_A + 3}], s{S_T1} offen offset:{j * 16}")
    for j in range(3):
        a(f"buffer_load_dwordx2 {vr(X + 2 * j, 2)}, v{vo2}, s[{S_X}:{S_X + 3}], s{S_T2} offen offset:{j * 8}")
    if not first:
        for j in range(3):
            a(f"buffer_load_dwordx2 {vr(B + 2 * j, 2)}, v{vo2}, s[{S_Y}:{S_Y + 3}], 0 offen offset:{j * 8}")
    a("s_waitcnt vmcnt(0)")
    for i in range(12):
        a(f"v_add_f32 v{P + i}, v{P + i}, v{P + 12 + i}")
        a(f"v_add_f32 v{P + 24 + i}, v{P + 24 + i}, v{P + 36 + i}")
    for i in range(12):
        a(f"v_add_f32 v{P + i}, v{P + i}, v{P + 24 + i}")
    for i in range(6):
        s0, s1 = P + 2 * i, P + 2 * i + 1
        a(f"v_cvt_pk_bf16_f32 v{TM}, v{s0}, v{s1}")
        a(f"v_lshlrev_b32 v{s0}, 16, v{TM}")
        a(f"v_and_b32 v{s1}, 0xffff0000, v{TM}")
        if not first:
            a(f"v_lshlrev_b32 v{TM}, 16, v{B + i}")
            a(f"v_and_b32 v{TM + 1}, 0xffff0000, v{B + i}")
            a(f"v_add_f32 v{s0}, v{s0}, v{TM}")
            a(f"v_add_f32 v{s1}, v{s1}, v{TM + 1}")
            a(f"v_cvt_pk_bf16_f32 v{TM}, v{s0}, v{s1}")
            a(f"v_lshlrev_b32 v{s0}, 16, v{TM}")
            a(f"v_and_b32 v{s1}, 0xffff0000, v{TM}")
        a(f"v_lshlrev_b32 v{TM}, 16, v{X + i}")
        a(f"v_and_b32 v{TM + 1}, 0xffff0000, v{X + i}")
        a(f"v_add_f32 v{s0}, v{s0}, v{TM}")
        a(f"v_add_f32 v{s1}, v{s1}, v{TM + 1}")
        a(f"v_cvt_pk_bf16_f32 v{X + i}, v{s0}, v{s1}")
        if first:
            a(f"v_lshlrev_b32 v{V + 2 * i}, 16, v{X + i}")
            a(f"v_and_b32 v{V + 2 * i + 1}, 0xffff0000, v{X + i}")
    for j in range(3):
        a(f"buffer_store_dwordx2 {vr(X + 2 * j, 2)}, v{vo2}, s[{S_O}:{S_O + 3}], s{S_T2} offen offset:{j * 8}")
    a("s_mov_b64 exec, -1")
    if first:
        emit_ln(a, [V + i for i in range(12)], mask, TM, [B + i for i in range(6)])
        set_exec(a, mask)
        for j in range(3):
            a(f"buffer_store_dwordx2 {vr(B + 2 * j, 2)}, v{vo2}, s[{S_Y}:{S_Y + 3}], s{S_T2} offen offset:{j * 8}")
    a.label(end)
    a("s_endpgm")
    a.end_kernel(name, 88)
    return (name, 512, 256, 0)
```

```python
from asmlib import *
from layout import *
from gemm import (S_A, S_W, S_O, S_X, S_Y, S_WAVE, S_WM, S_WN, S_GK, S_M0, S_N0, S_SPLIT, S_OFFA, S_OFFW, S_MA, S_MW,
                  S_T0, S_T1, S_T2, S_T3, S_P0, emit_ln, common_head)

WST = 64 * 288
import os
NOMFMA = os.environ.get('NOMFMA') == '1'
NOW = os.environ.get('NOW') == '1'
NOA = os.environ.get('NOA') == '1'
ROT2 = int(os.environ.get('ROT2', '0'))
NS_S = int(os.environ.get('NS_S', '4'))
PA_S = int(os.environ.get('PA_S', '4'))
NS_U = int(os.environ.get('NS_U', '3'))
PA_U = int(os.environ.get('PA_U', '4'))
UPMAP = int(os.environ.get('UPMAP', '0'))
LINW = os.environ.get('LINW') == '1'
S_KA, S_KWS = 54, 55


class VM:
    def __init__(self):
        self.ops = []

    def add(self, tag):
        self.ops.append(tag)

    def need(self, tags):
        last = max((i for i, t in enumerate(self.ops) if t in tags), default=-1)
        return len(self.ops) - 1 - last


class Gemm2:
    def __init__(self, a, tag, BM, GK, KLEN, mstride, ldw, NS, PA, w_perm):
        self.a, self.tag = a, tag
        self.BM, self.GK = BM, GK
        self.GM = 8 // GK
        assert BM == self.GM * 32
        self.KSW = 2 // GK
        self.NST = KLEN // 64
        self.NK = self.NST * self.KSW
        self.mstride, self.ldw, self.NS, self.PA, self.w_perm = mstride, ldw, NS, PA, w_perm
        self.TM, self.TN = 2, 9
        self.LDS = NS * WST
        self.vm = VM()

    def alloc(self, va):
        self.vL = va.get()
        self.vT = va.get(10)
        self.vA = [va.get() for _ in range(2)]
        self.vW_off = [va.get() for _ in range(3)]
        self.nb = (self.LDS + 65535) // 65536
        self.vW_rd = [va.get() for _ in range(self.nb)]
        self.fa = [[va.get(4, 4) for _ in range(2)] for _ in range(self.PA + 1)]
        self.fw = [[va.get(4, 4) for _ in range(9)] for _ in range(2)]
        self.acc = [[va.get(4, 4) for _ in range(2)] for _ in range(9)]

    def wave_ids(self):
        a = self.a
        a(f"v_lshrrev_b32 v{self.vT}, 6, v0")
        a(f"v_and_b32 v{self.vL}, 63, v0")
        a("s_nop 0")
        a(f"v_readfirstlane_b32 s{S_WAVE}, v{self.vT}")
        a("s_nop 3")
        gm = self.GM.bit_length() - 1
        a(f"s_and_b32 s{S_WM}, s{S_WAVE}, {self.GM - 1}")
        a(f"s_lshr_b32 s{S_GK}, s{S_WAVE}, {gm}")

    def setup_dma(self):
        a = self.a
        L, T = self.vL, self.vT
        a(f"s_lshr_b32 s{S_T0}, s{S_M0}, 4")
        a(f"s_lshl_b32 s{S_T1}, s{S_WM}, 1")
        a(f"s_add_u32 s{S_T0}, s{S_T0}, s{S_T1}")
        a(f"s_mul_i32 s{S_T0}, s{S_T0}, {self.mstride}")
        a(f"s_add_u32 s{S_OFFA}, s{S_OFFA}, s{S_T0}")
        if self.GK == 2:
            a(f"s_lshl_b32 s{S_T0}, s{S_GK}, 10")
            a(f"s_add_u32 s{S_OFFA}, s{S_OFFA}, s{S_T0}")
        a(f"v_lshlrev_b32 v{self.vA[0]}, 4, v{L}")
        a(f"v_add_u32 v{self.vA[1]}, 0x{self.mstride:x}, v{self.vA[0]}")
        a(f"s_lshl_b32 s{S_T2}, s{S_N0}, 1")
        a(f"s_mov_b32 s{S_T1}, {self.ldw}")
        a(f"s_lshl_b32 s{S_T0}, s{S_WAVE}, 3")
        for i in range(3):
            a(f"v_add_u32 v{T}, {64 * i}, v{L}")
            a(f"v_mul_u32_u24 v{T + 1}, 57, v{T}")
            a(f"v_lshrrev_b32 v{T + 1}, 10, v{T + 1}")
            a(f"v_mul_u32_u24 v{T + 2}, 18, v{T + 1}")
            a(f"v_sub_u32 v{T + 2}, v{T}, v{T + 2}")
            a(f"v_add_u32 v{T + 1}, s{S_T0}, v{T + 1}")
            if self.w_perm:
                a(f"v_bfe_u32 v{T + 3}, v{T + 1}, 2, 1")
                a(f"v_bfe_u32 v{T + 4}, v{T + 1}, 3, 1")
                a(f"v_and_b32 v{T + 1}, 0xfffffff3, v{T + 1}")
                a(f"v_lshl_or_b32 v{T + 1}, v{T + 3}, 3, v{T + 1}")
                a(f"v_lshl_or_b32 v{T + 1}, v{T + 4}, 2, v{T + 1}")
            a(f"v_mul_lo_u32 v{T + 1}, v{T + 1}, s{S_T1}")
            a(f"v_lshl_add_u32 v{T + 1}, v{T + 2}, 4, v{T + 1}")
            a(f"v_add_u32 v{self.vW_off[i]}, s{S_T2}, v{T + 1}")
        a(f"s_mul_i32 s{S_MW}, s{S_WAVE}, {144 * 16}")
        if LINW:
            a(f"s_mul_i32 s{S_T0}, s{S_N0}, {self.NST * 128}")
            a(f"s_add_u32 s{S_T0}, s{S_T0}, s{S_MW}")
            for i in range(3):
                a(f"v_lshlrev_b32 v{self.vW_off[i]}, 4, v{L}")
                a(f"v_add_u32 v{self.vW_off[i]}, s{S_T0}, v{self.vW_off[i]}")
                a(f"v_add_u32 v{self.vW_off[i]}, {1024 * i}, v{self.vW_off[i]}")

    def rotate(self, cm, cn):
        a = self.a
        if not ROT2:
            return
        a(f"s_lshr_b32 s{S_T0}, s2, 3")
        a(f"s_and_b32 s{S_T1}, s{S_T0}, 3")
        a(f"s_lshr_b32 s{S_T0}, s{S_T0}, 2")
        a(f"s_mul_i32 s{S_T0}, s{S_T0}, {cm}")
        a(f"s_mul_i32 s{S_T1}, s{S_T1}, {cn}")
        a(f"s_add_u32 s{S_KWS}, s{S_T0}, s{S_T1}")
        a(f"s_cmp_ge_u32 s{S_KWS}, {self.NST}")
        a(f"s_cselect_b32 s{S_T0}, {self.NST}, 0")
        a(f"s_sub_u32 s{S_KWS}, s{S_KWS}, s{S_T0}")
        a(f"s_mul_i32 s{S_T0}, s{S_KWS}, 2048")
        a(f"s_add_u32 s{S_OFFA}, s{S_OFFA}, s{S_T0}")
        a(f"s_mul_i32 s{S_T0}, s{S_KWS}, 0x{64 * self.ldw:x}")
        a(f"s_add_u32 s{S_OFFW}, s{S_OFFW}, s{S_T0}")
        a(f"s_mul_i32 s{S_KA}, s{S_KWS}, {self.KSW}")

    def setup_rd(self):
        a = self.a
        L, T = self.vL, self.vT
        w0 = self.vW_rd[0]
        a(f"v_lshrrev_b32 v{T}, 4, v{L}")
        a(f"v_bfe_u32 v{T + 1}, v{L}, 2, 2")
        a(f"v_and_b32 v{T + 2}, 3, v{L}")
        a(f"v_lshrrev_b32 v{T + 3}, 1, v{T}")
        a(f"v_lshl_add_u32 v{T + 1}, v{T + 3}, 4, v{T + 1}")
        a(f"v_and_b32 v{T + 3}, 1, v{T}")
        a(f"v_lshl_add_u32 v{T + 1}, v{T + 3}, 2, v{T + 1}")
        a(f"v_mul_u32_u24 v{T + 1}, 288, v{T + 1}")
        a(f"v_lshl_add_u32 v{w0}, v{T + 2}, 3, v{T + 1}")
        if self.GK == 2:
            a(f"s_mul_i32 s{S_T1}, s{S_GK}, {32 * 288}")
            a(f"v_add_u32 v{w0}, s{S_T1}, v{w0}")
        for k in range(1, self.nb):
            a(f"v_add_u32 v{self.vW_rd[k]}, 0x{65536 * k:x}, v{w0}")
        for row in self.acc:
            for r in row:
                for j in range(4):
                    a(f"v_mov_b32 v{r + j}, 0")

    def w_dma(self, s):
        wb = (s % self.NS) * WST
        it = []
        for i in range(3):
            g = [f"s_add_u32 m0, s{S_MW}, 0x{wb + i * 1024:x}"]
            if i == 2:
                g += ["s_mov_b64 exec, 0xffff",
                      f"buffer_load_dwordx4 v{self.vW_off[i]}, s[{S_W}:{S_W + 3}], s{S_OFFW} offen lds",
                      "s_mov_b64 exec, -1", f"s_add_u32 s{S_OFFW}, s{S_OFFW}, 0x{(18432 if LINW else 64 * self.ldw):x}"]
                if ROT2:
                    g += [f"s_add_u32 s{S_KWS}, s{S_KWS}, 1", f"s_cmp_eq_u32 s{S_KWS}, {self.NST}",
                          f"s_cselect_b32 s{S_T3}, 0x{self.NST * 64 * self.ldw:x}, 0",
                          f"s_cselect_b32 s{S_KWS}, 0, s{S_KWS}", f"s_sub_u32 s{S_OFFW}, s{S_OFFW}, s{S_T3}"]
            else:
                g += ["s_nop 0", f"buffer_load_dwordx4 v{self.vW_off[i]}, s[{S_W}:{S_W + 3}], s{S_OFFW} offen lds"]
            if NOW:
                g = [x for x in g if not x.startswith("buffer_load")] + ["s_nop 0"]
            it.append((g, ("W", s)))
        return it

    def a_load(self, g):
        f = self.fa[g % (self.PA + 1)]
        step = 1024 * self.GK
        if NOA:
            return [(["s_nop 0"], ("A", g)), (["s_nop 0"], ("A", g))]
        return [([f"buffer_load_dwordx4 {vr(f[0], 4)}, v{self.vA[0]}, s[{S_A}:{S_A + 3}], s{S_OFFA} offen"], ("A", g)),
                ([f"buffer_load_dwordx4 {vr(f[1], 4)}, v{self.vA[1]}, s[{S_A}:{S_A + 3}], s{S_OFFA} offen",
                  f"s_add_u32 s{S_OFFA}, s{S_OFFA}, {step}"] + ([] if not ROT2 else [
                      f"s_add_u32 s{S_KA}, s{S_KA}, 1", f"s_cmp_eq_u32 s{S_KA}, {self.NK}",
                      f"s_cselect_b32 s{S_T2}, 0x{self.NK * step:x}, 0",
                      f"s_cselect_b32 s{S_KA}, 0, s{S_KA}", f"s_sub_u32 s{S_OFFA}, s{S_OFFA}, s{S_T2}"]), ("A", g))]

    def emit_vm(self, items):
        for g, tag in items:
            self.a.many(g)
            self.vm.add(tag)

    def prologue(self):
        g = 0
        for s in range(self.NS):
            for _ in range(self.KSW):
                if g < self.PA:
                    self.emit_vm(self.a_load(g))
                    g += 1
            self.emit_vm(self.w_dma(s))
        while g < self.PA:
            self.emit_vm(self.a_load(g))
            g += 1

    def frag_reads(self, g, fb):
        s, ks = g // self.KSW, g % self.KSW
        base = (s % self.NS) * WST + (ks * 32 * 288 if self.GK == 1 else 0)
        out = []
        for tn in range(9):
            for h in range(2):
                o = base + tn * 32 + h * 8 * 288
                out.append(f"ds_read_b64_tr_b16 {vr(self.fw[fb][tn] + 2 * h, 2)}, v{self.vW_rd[o >> 16]} offset:{o & 0xffff}")
        return out

    def mainloop(self):
        a = self.a
        stamp(a, 1)
        a(f"s_waitcnt vmcnt({self.vm.need({('W', 0)})})")
        a("s_barrier")
        stamp(a, 2)
        a.many(self.frag_reads(0, 0))
        for g in range(self.NK):
            s, ks = g // self.KSW, g % self.KSW
            last = ks == self.KSW - 1
            par = g & 1
            need = {("A", g)}
            if last and s + 1 < self.NST:
                need.add(("W", s + 1))
            a(f"s_waitcnt vmcnt({self.vm.need(need)}) lgkmcnt(0)")
            if last and s + 1 < self.NST:
                a("s_barrier")
            vmi = []
            if g + self.PA < self.NK:
                vmi += self.a_load(g + self.PA)
            if last and s + self.NS < self.NST:
                vmi += self.w_dma(s + self.NS)
            reads = self.frag_reads(g + 1, par ^ 1) if g + 1 < self.NK else []
            fill = []
            step = max(1, len(reads) // max(1, len(vmi)))
            vi = 0
            for i, r in enumerate(reads):
                fill.append(r)
                if i % step == step - 1 and vi < len(vmi):
                    fill.append(vmi[vi][0]); self.vm.add(vmi[vi][1]); vi += 1
            for k in range(vi, len(vmi)):
                fill.append(vmi[k][0]); self.vm.add(vmi[k][1])
            f = self.fa[g % (self.PA + 1)]
            mf = []
            for tn in range(9):
                for tm in range(2):
                    c = vr(self.acc[tn][tm], 4)
                    mf.append(f"v_mfma_f32_16x16x32_bf16 {c}, {vr(self.fw[par][tn], 4)}, {vr(f[tm], 4)}, {c}")
            if NOMFMA:
                mf = ["s_nop 0"] * len(mf)
            interleave(a, mf, fill)
        a("s_nop 15")
        stamp(a, 3)


def gen_splitk2(a, name, act_off, mstride, wkey, klen, w_perm, out_off, kidx, fuse=None):
    a.begin_kernel(name)
    end = f"L_{name}_end"
    common_head(a, 256, end)
    g = Gemm2(a, name[:4], 128, 2, klen, mstride, 1152, NS_S, PA_S, w_perm)
    va = VAlloc(1)
    g.alloc(va)
    a(f"s_load_dwordx2 s[{S_P0}:{S_P0 + 1}], s[0:1], {KARG[wkey]}")
    a(f"s_load_dwordx2 s[{S_P0 + 2}:{S_P0 + 3}], s[0:1], {KARG['ws']}")
    g.wave_ids()
    a(f"s_and_b32 s{S_SPLIT}, s2, 3")
    a(f"s_bfe_u32 s{S_T0}, s2, 0x10002")
    a(f"s_lshr_b32 s{S_T1}, s2, 3")
    a(f"s_and_b32 s{S_T2}, s{S_T1}, 3")
    a(f"s_mul_i32 s{S_N0}, s{S_T2}, 144")
    a(f"s_lshr_b32 s{S_T1}, s{S_T1}, 2")
    a(f"s_lshl_b32 s{S_T0}, s{S_T0}, 3")
    a(f"s_add_u32 s{S_T1}, s{S_T1}, s{S_T0}")
    a(f"s_lshl_b32 s{S_M0}, s{S_T1}, 7")
    a(f"s_mul_i32 s{S_OFFA}, s{S_SPLIT}, {klen // 32 * 1024}")
    a(f"s_mul_i32 s{S_OFFW}, s{S_SPLIT}, {klen * 1152}")
    a("s_waitcnt lgkmcnt(0)")
    srd_from(a, S_A, S_P0 + 2, act_off, 128 * mstride)
    srd_from(a, S_W, S_P0, 0, klen * 4 * 1152)
    srd_from(a, S_O, S_P0 + 2, out_off, 4 * 2048 * 2304)
    g.rotate(2, 5)
    g.setup_dma()
    g.prologue()
    g.setup_rd()
    T, L = g.vT, g.vL
    PITCH, REG = 592, 128 * 592
    la = [va.get(3) for _ in range(9)]
    a(f"s_mul_i32 s56, s{S_SPLIT}, {2048 * 2304}")
    a(f"s_lshl_b32 s58, s{S_WAVE}, 4")
    a(f"s_add_u32 s57, s{S_M0}, s58")
    a(f"s_mul_i32 s57, s57, 2304")
    a(f"s_add_u32 s56, s56, s57")
    a(f"s_lshl_b32 s57, s{S_N0}, 2")
    a(f"s_add_u32 s56, s56, s57")
    a(f"s_mul_i32 s58, s58, {PITCH}")
    pass
    for i in range(9):
        r = la[i]
        a(f"v_add_u32 v{T + 1}, {64 * i}, v{L}")
        a(f"v_mul_u32_u24 v{T + 2}, 1821, v{T + 1}")
        a(f"v_lshrrev_b32 v{T + 2}, 16, v{T + 2}")
        a(f"v_mul_u32_u24 v{T + 3}, 36, v{T + 2}")
        a(f"v_sub_u32 v{T + 3}, v{T + 1}, v{T + 3}")
        a(f"v_lshlrev_b32 v{T + 3}, 4, v{T + 3}")
        a(f"v_mul_u32_u24 v{r}, {PITCH}, v{T + 2}")
        a(f"v_add3_u32 v{r}, v{r}, v{T + 3}, s58")
        a(f"v_add_u32 v{r + 2}, 0x{REG:x}, v{r}")
        a(f"v_mul_u32_u24 v{r + 1}, 2304, v{T + 2}")
        a(f"v_add_u32 v{r + 1}, v{r + 1}, v{T + 3}")
    g.mainloop()
    a("s_barrier")
    a(f"s_lshl_b32 s{S_T0}, s{S_WM}, 5")
    a(f"v_and_b32 v{T}, 15, v{L}")
    a(f"v_add_u32 v{T}, s{S_T0}, v{T}")
    a(f"v_mul_u32_u24 v{T}, {PITCH}, v{T}")
    a(f"v_lshrrev_b32 v{T + 1}, 4, v{L}")
    a(f"v_lshl_add_u32 v{T}, v{T + 1}, 4, v{T}")
    a(f"s_mul_i32 s{S_T0}, s{S_GK}, {REG}")
    a(f"v_add_u32 v{T}, s{S_T0}, v{T}")
    for tn in range(9):
        for tm in range(2):
            a(f"ds_write_b128 v{T}, {vr(g.acc[tn][tm], 4)} offset:{tm * 16 * PITCH + tn * 64}")
    a("s_waitcnt lgkmcnt(0)")
    a("s_barrier")
    for i in range(9):
        a(f"ds_read_b128 {vr(g.acc[i][0], 4)}, v{la[i]}")
        a(f"ds_read_b128 {vr(g.acc[i][1], 4)}, v{la[i] + 2}")
    for i in range(9):
        a(f"s_waitcnt lgkmcnt({min(14, 16 - 2 * i)})")
        c, d = g.acc[i][0], g.acc[i][1]
        for q in range(4):
            a(f"v_add_f32 v{c + q}, v{c + q}, v{d + q}")
        a(f"buffer_store_dwordx4 {vr(c, 4)}, v{la[i] + 1}, s[{S_O}:{S_O + 3}], s56 offen")
    stamp(a, 4)
    if fuse is not None:
        a(f"s_lshr_b32 s58, s{S_M0}, 7")
        a(f"s_bfe_u32 s59, s2, 0x20003")
        a(f"s_lshl_b32 s{S_T3}, s{S_SPLIT}, 2")
        a(f"s_add_u32 s59, s59, s{S_T3}")
        team_barrier(a, name, 58, 0, 16, T)
        stamp(a, 5)
        a(f"s_lshl_b32 s{S_T0}, s59, 3")
        a(f"s_add_u32 s{S_T0}, s{S_T0}, s{S_M0}")
        a(f"s_add_u32 s{S_T0}, s{S_T0}, s{S_WAVE}")
        emit_reduce_row(a, out_off, fuse == "first", " sc1")
        a("s_mov_b64 exec, -1")
        stamp(a, 6)
        stamp_dump(a, 7, kidx, T, S_WAVE)
    else:
        stamp_dump(a, 5, kidx, T, S_WAVE)
    a.label(end)
    a("s_endpgm")
    a.end_kernel(name, va.hi)
    return (name, 256, 512, max(g.LDS, 2 * REG))


def gen_up2(a, kidx=4):
    name = "mlp_up_kernel"
    a.begin_kernel(name)
    end = f"L_{name}_end"
    common_head(a, 256, end)
    g = Gemm2(a, "up", 256, 1, 576, 18432, 9216, NS_U, PA_U, True)
    va = VAlloc(1)
    g.alloc(va)
    bias = [va.get(2, 2) for _ in range(9)]
    a(f"s_load_dwordx4 s[{S_P0 + 4}:{S_P0 + 7}], s[0:1], {KARG['w1']}")
    a(f"s_load_dwordx2 s[{S_P0 + 2}:{S_P0 + 3}], s[0:1], {KARG['ws']}")
    g.wave_ids()
    if UPMAP == 0:
        a(f"s_and_b32 s{S_T0}, s2, 7")
        a(f"s_lshr_b32 s{S_T1}, s2, 3")
        a(f"s_and_b32 s{S_T2}, s{S_T1}, 3")
        a(f"s_lshl_b32 s{S_T0}, s{S_T0}, 2")
        a(f"s_add_u32 s{S_SPLIT}, s{S_T0}, s{S_T2}")
        a(f"s_lshr_b32 s{S_T1}, s{S_T1}, 2")
    else:
        a(f"s_bfe_u32 s{S_T0}, s2, 0x20001")
        a(f"s_lshr_b32 s{S_T1}, s2, 3")
        a(f"s_and_b32 s{S_T2}, s{S_T1}, 7")
        a(f"s_lshl_b32 s{S_T0}, s{S_T0}, 3")
        a(f"s_add_u32 s{S_SPLIT}, s{S_T0}, s{S_T2}")
        a(f"s_lshr_b32 s{S_T1}, s{S_T1}, 3")
        a(f"s_and_b32 s{S_T2}, s2, 1")
        a(f"s_lshl_b32 s{S_T2}, s{S_T2}, 2")
        a(f"s_add_u32 s{S_T1}, s{S_T1}, s{S_T2}")
    a(f"s_lshl_b32 s{S_M0}, s{S_T1}, 8")
    a(f"s_mul_i32 s{S_N0}, s{S_SPLIT}, 144")
    a(f"s_mov_b32 s{S_OFFA}, 0")
    a(f"s_mov_b32 s{S_OFFW}, 0")
    a("s_waitcnt lgkmcnt(0)")
    srd_from(a, S_A, S_P0 + 2, WS_HN, 2048 * 1152)
    srd_from(a, S_W, S_P0 + 4, 0, 576 * 9216)
    srd_from(a, S_O, S_P0 + 2, WS_ACT, 2048 * 9216)
    srd_from(a, S_X, S_P0 + 6, 0, 9216)
    T, L = g.vT, g.vL
    g.rotate(1, 2)
    g.setup_dma()
    g.prologue()
    a(f"v_lshrrev_b32 v{T}, 4, v{L}")
    a(f"v_lshlrev_b32 v{T}, 3, v{T}")
    a(f"s_lshl_b32 s{S_T0}, s{S_N0}, 1")
    for tn in range(9):
        a(f"buffer_load_dwordx2 {vr(bias[tn], 2)}, v{T}, s[{S_X}:{S_X + 3}], s{S_T0} offen offset:{tn * 32}")
        g.vm.add(("B", tn))
    g.setup_rd()
    PITCH = 304
    la = [va.get(2) for _ in range(9)]
    a(f"s_mul_i32 s58, s{S_WAVE}, {32 * PITCH}")
    a(f"v_and_b32 v{T}, 15, v{L}")
    a(f"v_mul_u32_u24 v{T}, {PITCH}, v{T}")
    a(f"v_lshrrev_b32 v{T + 1}, 4, v{L}")
    a(f"s_lshr_b32 s56, s{S_M0}, 4")
    a(f"s_lshl_b32 s57, s{S_WM}, 1")
    a(f"s_add_u32 s56, s56, s57")
    a(f"s_mul_i32 s56, s56, 147456")
    a(f"s_mul_i32 s57, s{S_SPLIT}, 18")
    a(f"v_and_b32 v{T + 3}, 15, v{L}")
    a(f"v_lshlrev_b32 v{T + 3}, 4, v{T + 3}")
    a(f"v_add_u32 v{T}, s58, v{T}")
    pass
    a(f"s_mov_b32 s59, 147456")
    for i in range(9):
        r = la[i]
        a(f"v_add_u32 v{T + 4}, {4 * i}, v{T + 1}")
        a(f"v_mul_u32_u24 v{T + 5}, 57, v{T + 4}")
        a(f"v_lshrrev_b32 v{T + 5}, 10, v{T + 5}")
        a(f"v_mul_u32_u24 v{T + 6}, 18, v{T + 5}")
        a(f"v_sub_u32 v{T + 6}, v{T + 4}, v{T + 6}")
        a(f"v_mul_u32_u24 v{r}, {16 * PITCH}, v{T + 5}")
        a(f"v_lshl_add_u32 v{r}, v{T + 6}, 4, v{r}")
        a(f"v_add_u32 v{r}, v{r}, v{T}")
        a(f"v_add_u32 v{T + 6}, s57, v{T + 6}")
        a(f"v_lshrrev_b32 v{T + 7}, 2, v{T + 6}")
        a(f"v_lshl_add_u32 v{T + 7}, v{T + 7}, 10, v{T + 3}")
        a(f"v_and_b32 v{T + 6}, 3, v{T + 6}")
        a(f"v_lshl_add_u32 v{T + 7}, v{T + 6}, 8, v{T + 7}")
        a(f"v_mul_lo_u32 v{T + 5}, v{T + 5}, s59")
        a(f"v_add_u32 v{r + 1}, v{T + 7}, v{T + 5}")
    g.mainloop()
    a("s_waitcnt vmcnt(0)")
    a("s_barrier")
    a(f"s_mul_i32 s{S_T2}, s{S_WAVE}, {32 * PITCH}")
    a(f"v_and_b32 v{T}, 15, v{L}")
    a(f"v_mul_u32_u24 v{T}, {PITCH}, v{T}")
    a(f"v_lshrrev_b32 v{T + 1}, 4, v{L}")
    a(f"v_lshl_add_u32 v{T + 2}, v{T + 1}, 3, v{T}")
    a(f"v_add_u32 v{T + 2}, s{S_T2}, v{T + 2}")
    bf = g.fw[0][0]
    k = 0
    for tn in range(9):
        b = bias[tn]
        a(f"v_lshlrev_b32 v{bf}, 16, v{b}")
        a(f"v_and_b32 v{bf + 1}, 0xffff0000, v{b}")
        a(f"v_lshlrev_b32 v{bf + 2}, 16, v{b + 1}")
        a(f"v_and_b32 v{bf + 3}, 0xffff0000, v{b + 1}")
        for tm in range(2):
            c = g.acc[tn][tm]
            for q in range(4):
                a(f"v_add_f32 v{c + q}, v{c + q}, v{bf + q}")
            for q in range(4):
                a(f"v_max_f32 v{c + q}, 0, v{c + q}")
            for q in range(4):
                a(f"v_mul_f32 v{c + q}, v{c + q}, v{c + q}")
            a(f"v_cvt_pk_bf16_f32 v{c}, v{c}, v{c + 1}")
            a(f"v_cvt_pk_bf16_f32 v{c + 1}, v{c + 2}, v{c + 3}")
            a(f"ds_write_b64 v{T + 2}, {vr(c, 2)} offset:{tm * 16 * PITCH + tn * 32}")
    a("s_waitcnt lgkmcnt(0)")
    for i in range(9):
        a(f"ds_read_b128 {vr(g.acc[i][0], 4)}, v{la[i]}")
    for i in range(9):
        a(f"s_waitcnt lgkmcnt({8 - i})")
        a(f"buffer_store_dwordx4 {vr(g.acc[i][0], 4)}, v{la[i] + 1}, s[{S_O}:{S_O + 3}], s56 offen")
    stamp(a, 4)
    stamp_dump(a, 5, kidx, T, S_WAVE)
    a.label(end)
    a("s_endpgm")
    a.end_kernel(name, va.hi)
    return (name, 256, 512, max(g.LDS, 8 * 32 * PITCH))


def emit_reduce_row(a, part_off, first, ldflag=""):
    a(f"s_load_dwordx2 s[{S_P0 + 2}:{S_P0 + 3}], s[0:1], {KARG['ws']}")
    if first:
        a(f"s_load_dwordx2 s[{S_P0}:{S_P0 + 1}], s[0:1], {KARG['x']}")
    else:
        a(f"s_load_dwordx4 s[{S_P0 + 4}:{S_P0 + 7}], s[0:1], {KARG['b2']}")
    vL = 1
    a(f"s_mul_i32 s{S_T1}, s{S_T0}, 2304")
    a(f"s_mul_i32 s{S_T2}, s{S_T0}, 1152")
    a(f"s_lshr_b32 s38, s{S_T0}, 4")
    a(f"s_mul_i32 s38, s38, 18432")
    a(f"s_and_b32 s39, s{S_T0}, 15")
    a(f"s_lshl_b32 s39, s39, 4")
    a(f"s_add_u32 s38, s38, s39")
    a("s_waitcnt lgkmcnt(0)")
    srd_from(a, S_A, S_P0 + 2, part_off, 4 * 2048 * 2304)
    if first:
        srd_from(a, S_X, S_P0, 0, 2048 * 1152)
        srd_from(a, S_O, S_P0 + 2, WS_H, 2048 * 1152)
        srd_from(a, S_Y, S_P0 + 2, WS_HN, 2048 * 1152)
    else:
        srd_from(a, S_X, S_P0 + 2, WS_H, 2048 * 1152)
        srd_from(a, S_O, S_P0 + 6, 0, 2048 * 1152)
        srd_from(a, S_Y, S_P0 + 4, 0, 1152)
    vo4, vo2, vo3 = 4, 5, 6
    a(f"v_lshlrev_b32 v{vo4}, 6, v{vL}")
    a(f"v_lshlrev_b32 v{vo2}, 5, v{vL}")
    P = 8
    X = 72
    B = 80
    V = 88
    TM = 104
    mask = (1 << 36) - 1
    set_exec(a, mask)
    for s in range(4):
        if s:
            a(f"s_add_u32 s{S_T1}, s{S_T1}, {2048 * 2304}")
        for j in range(4):
            a(f"buffer_load_dwordx4 {vr(P + s * 16 + j * 4, 4)}, v{vo4}, s[{S_A}:{S_A + 3}], s{S_T1} offen offset:{j * 16}{ldflag}")
    for j in range(2):
        a(f"buffer_load_dwordx4 {vr(X + 4 * j, 4)}, v{vo2}, s[{S_X}:{S_X + 3}], s{S_T2} offen offset:{j * 16}")
    if not first:
        for j in range(2):
            a(f"buffer_load_dwordx4 {vr(B + 4 * j, 4)}, v{vo2}, s[{S_Y}:{S_Y + 3}], 0 offen offset:{j * 16}")
    a(f"v_lshrrev_b32 v{vo3}, 1, v{vL}")
    a(f"v_lshlrev_b32 v{vo3}, 10, v{vo3}")
    a(f"v_and_b32 v{TM}, 1, v{vL}")
    a(f"v_lshl_add_u32 v{vo3}, v{TM}, 9, v{vo3}")
    a("s_waitcnt vmcnt(0)")
    for i in range(16):
        a(f"v_add_f32 v{P + i}, v{P + i}, v{P + 16 + i}")
        a(f"v_add_f32 v{P + 32 + i}, v{P + 32 + i}, v{P + 48 + i}")
    for i in range(16):
        a(f"v_add_f32 v{P + i}, v{P + i}, v{P + 32 + i}")
    for i in range(8):
        s0, s1 = P + 2 * i, P + 2 * i + 1
        a(f"v_cvt_pk_bf16_f32 v{TM}, v{s0}, v{s1}")
        a(f"v_lshlrev_b32 v{s0}, 16, v{TM}")
        a(f"v_and_b32 v{s1}, 0xffff0000, v{TM}")
        if not first:
            a(f"v_lshlrev_b32 v{TM}, 16, v{B + i}")
            a(f"v_and_b32 v{TM + 1}, 0xffff0000, v{B + i}")
            a(f"v_add_f32 v{s0}, v{s0}, v{TM}")
            a(f"v_add_f32 v{s1}, v{s1}, v{TM + 1}")
            a(f"v_cvt_pk_bf16_f32 v{TM}, v{s0}, v{s1}")
            a(f"v_lshlrev_b32 v{s0}, 16, v{TM}")
            a(f"v_and_b32 v{s1}, 0xffff0000, v{TM}")
        a(f"v_lshlrev_b32 v{TM}, 16, v{X + i}")
        a(f"v_and_b32 v{TM + 1}, 0xffff0000, v{X + i}")
        a(f"v_add_f32 v{s0}, v{s0}, v{TM}")
        a(f"v_add_f32 v{s1}, v{s1}, v{TM + 1}")
        a(f"v_cvt_pk_bf16_f32 v{X + i}, v{s0}, v{s1}")
        if first:
            a(f"v_lshlrev_b32 v{V + 2 * i}, 16, v{X + i}")
            a(f"v_and_b32 v{V + 2 * i + 1}, 0xffff0000, v{X + i}")
    for j in range(2):
        a(f"buffer_store_dwordx4 {vr(X + 4 * j, 4)}, v{vo2}, s[{S_O}:{S_O + 3}], s{S_T2} offen offset:{j * 16}")
    a("s_mov_b64 exec, -1")
    if first:
        emit_ln(a, [V + i for i in range(16)], mask, TM, [B + i for i in range(8)])
        set_exec(a, mask)
        a(f"buffer_store_dwordx4 {vr(B, 4)}, v{vo3}, s[{S_Y}:{S_Y + 3}], s38 offen")
        a(f"buffer_store_dwordx4 {vr(B + 4, 4)}, v{vo3}, s[{S_Y}:{S_Y + 3}], s38 offen offset:256")


def gen_reduce2(a, name, part_off, first):
    a.begin_kernel(name)
    end = f"L_{name}_end"
    RW = int(os.environ.get("RW", "4"))
    common_head(a, 2048 // RW, end)
    a(f"v_lshrrev_b32 v2, 6, v0")
    a(f"v_and_b32 v1, 63, v0")
    a("s_nop 0")
    a(f"v_readfirstlane_b32 s{S_WAVE}, v2")
    a("s_nop 3")
    a(f"s_mul_i32 s{S_T0}, s2, {RW}")
    a(f"s_add_u32 s{S_T0}, s{S_T0}, s{S_WAVE}")
    emit_reduce_row(a, part_off, first)
    a.label(end)
    a("s_endpgm")
    a.end_kernel(name, 112)
    return (name, 2048 // RW, 64 * RW, 0)


def team_barrier(a, tag, s_team, idx, target, vt):
    a(f"s_load_dwordx2 s[56:57], s[0:1], {KARG['dbg']}")
    a("s_waitcnt vmcnt(0) lgkmcnt(0)")
    a("s_barrier")
    skip = f"L_{tag}_tb{idx}_skip"
    loop = f"L_{tag}_tb{idx}_loop"
    okl = f"L_{tag}_tb{idx}_ok"
    a(f"s_cmp_lg_u32 s{S_WAVE}, 0")
    a(f"s_cbranch_scc1 {skip}")
    srd_from(a, S_X, 56, 0, 256)
    a(f"s_lshl_b32 s{S_T0}, s{s_team}, 4")
    a(f"s_add_u32 s{S_T0}, s{S_T0}, {4 * idx}")
    a(f"v_mov_b32 v{vt}, 0")
    a(f"v_mov_b32 v{vt + 1}, 1")
    a("s_mov_b64 exec, 1")
    a(f"buffer_atomic_add v{vt + 1}, v{vt}, s[{S_X}:{S_X + 3}], s{S_T0} offen")
    a(f"s_mov_b32 s{S_T1}, 0x40000")
    a.label(loop)
    a(f"buffer_load_dword v{vt + 1}, v{vt}, s[{S_X}:{S_X + 3}], s{S_T0} offen sc1")
    a("s_waitcnt vmcnt(0)")
    a(f"v_readfirstlane_b32 s{S_T2}, v{vt + 1}")
    a(f"s_sub_u32 s{S_T1}, s{S_T1}, 1")
    a(f"s_cmp_ge_u32 s{S_T2}, {target}")
    a(f"s_cbranch_scc1 {okl}")
    a("s_sleep 1")
    a(f"s_cmp_lg_u32 s{S_T1}, 0")
    a(f"s_cbranch_scc1 {loop}")
    a.label(okl)
    a("s_mov_b64 exec, -1")
    a("buffer_inv sc1")
    a("s_waitcnt vmcnt(0)")
    a.label(skip)
    a("s_barrier")
```
